```python
import torch

def _softmax(x, axis=-1):
    return torch.softmax(x, dim=axis)

def _gelu(x):
    return torch.nn.functional.gelu(x, approximate='tanh')

def _silu(x):
    return torch.nn.functional.silu(x)

def _sigmoid(x):
    return torch.sigmoid(x)

def _layernorm(x, axis=-1, eps=1e-05):
    m = x.mean(dim=axis, keepdim=True)
    v = x.var(dim=axis, keepdim=True, unbiased=False)
    return (x - m) / torch.sqrt(v + eps)

def _scatter_add(tgt, idx, src, axis=0):
    return tgt.clone().index_add_(axis, idx, src)

def _segment_sum(src, seg, n):
    out = torch.zeros((n,) + src.shape[1:], dtype=src.dtype)
    return out.index_add_(0, seg, src)

def _pad(x, pw):
    flat = tuple((v for pair in reversed(pw) for v in pair))
    return torch.nn.functional.pad(x, flat)
kernel_name = 'parallel_sum__memory_aug_recurrent_mem_tr__swiglu_ffn__prompt'

def setup_inputs():

    _w = lambda a: (lambda t: t.to(torch.bfloat16) if t.is_floating_point() else t)(torch.as_tensor(a))

    def _A_setup():
        B, S, Dm = (1, 2048, 640)
        H, Dh = (32, 192)
        M, seg = (8, 32)
        seg = min(seg, S)
        S = S // seg * seg
        return {'x': _w((lambda *s: torch.randn(*s, dtype=torch.bfloat16) * 0.05)(B, S, Dm)), 'mem0': _w((lambda *s: torch.randn(*s, dtype=torch.bfloat16) * 1.6)(B, M, Dm)), 'Wq': _w((lambda *s: torch.randn(*s, dtype=torch.bfloat16) * 0.8)(Dm, H, Dh) * Dm ** (-0.5)), 'Wk': _w((lambda *s: torch.randn(*s, dtype=torch.bfloat16) * 0.8)(Dm, H, Dh) * Dm ** (-0.5)), 'Wv': _w((lambda *s: torch.randn(*s, dtype=torch.bfloat16) * 1.6)(Dm, H, Dh) * Dm ** (-0.5)), 'Wo': _w((lambda *s: torch.randn(*s, dtype=torch.bfloat16) * 1.6)(H, Dh, Dm) * (H * Dh) ** (-0.5)), 'seg_len': seg}
    _A_in = _A_setup()

    def _B_setup():
        B, S, D, F = (1, 2048, 640, 1536)
        return {'x': _w((lambda *s: torch.randn(*s, dtype=torch.bfloat16) * 0.05)(B, S, D)), 'w_gate': _w((lambda *s: torch.randn(*s, dtype=torch.bfloat16) * 0.05)(D, F)), 'w_up': _w((lambda *s: torch.randn(*s, dtype=torch.bfloat16) * 0.05)(D, F)), 'w_down': _w((lambda *s: torch.randn(*s, dtype=torch.bfloat16) * 0.05)(F, D))}
    _B_in = _B_setup()
    return {'A_x': _A_in['x'], 'A_mem0': _A_in['mem0'], 'A_Wq': _A_in['Wq'], 'A_Wk': _A_in['Wk'], 'A_Wv': _A_in['Wv'], 'A_Wo': _A_in['Wo'], 'A_seg_len': _A_in['seg_len'], 'B_x': _B_in['x'], 'B_w_gate': _B_in['w_gate'], 'B_w_up': _B_in['w_up'], 'B_w_down': _B_in['w_down']}

def reference(A_x, A_mem0, A_Wq, A_Wk, A_Wv, A_Wo, A_seg_len, B_x, B_w_gate, B_w_up, B_w_down):

    def _A_ref(x, mem0, Wq, Wk, Wv, Wo, seg_len):
        B, S, Dm = x.shape
        H, Dh = (Wq.shape[1], Wq.shape[2])
        M = mem0.shape[1]
        scale = Dh ** (-0.5)
        n_seg = S // seg_len
        L = M + seg_len
        idx = torch.arange(L)
        mask = (idx[:, None] < M) | (idx[:, None] >= idx[None, :])
        mem = mem0
        outs = []
        for s in range(n_seg):
            xs = x[:, s * seg_len:(s + 1) * seg_len, :].clone()
            h = torch.concatenate([mem, xs], axis=1)
            q = torch.einsum('btd,dhe->bhte', h, Wq)
            k = torch.einsum('btd,dhe->bhte', h, Wk)
            v = torch.einsum('btd,dhe->bhte', h, Wv)
            scores = torch.einsum('bhqe,bhke->bhqk', q, k) * scale
            scores = torch.where(mask[None, None], scores, -1000000000.0)
            p = _softmax(scores, axis=-1)
            o = torch.einsum('bhqk,bhke->bhqe', p, v)
            o = torch.einsum('bhte,hed->btd', o, Wo)
            mem = o[:, :M, :].clone()
            outs.append(o[:, M:, :])
        return torch.concatenate(outs, axis=1)

    def _B_ref(x, w_gate, w_up, w_down):
        g = _silu(x @ w_gate)
        u = x @ w_up
        return g * u @ w_down
    x = A_x
    xn = _layernorm(x, axis=-1)
    return x + _A_ref(xn, A_mem0, A_Wq, A_Wk, A_Wv, A_Wo, A_seg_len) + _B_ref(xn, B_w_gate, B_w_up, B_w_down)
```

```python
import sys, json
from fw import *; import k1b, rec, rec2, hz, bulk
NAME = "parallel_sum__memory_aug_recurrent_mem_tr__swiglu_ffn__prompt_kernel"
rec.TUNE.update(dict(pthr=3, xthr=3, sl_v=14, sl_x=7, sl_pub=0, sl_y=0, ythr=2, ysl=0, light=0, lthr=1, sl_q=12, xdrop=0, ycomb=0, spec=1, dma2=1, group=2, kqd=0, ctouch=2, wflag=" nt"))
bulk.MERGED = True
def build(path, plain=False):
    A = Asm()
    d = rec2.gen_merged(A, NAME)
    launch = "; @launch grid=(256,1,1) block=(256,1,1) lds=163840" if plain else "; @launch kernel=%s grid=(256,1,1) block=(256,1,1) lds=163840" % NAME
    t = launch + "\n.amdgcn_target \"amdgcn-amd-amdhsa--gfx950\"\n" + A.text() + d
    open(path, "w").write(t)
    e = hz.check(t, verbose=False)
    if e: hz.check(t)
if __name__ == "__main__":
    variants = json.loads(sys.argv[1]) if len(sys.argv) > 1 else [{}]
    base = dict(rec.TUNE)
    for i, v in enumerate(variants):
        rec.TUNE.clear(); rec.TUNE.update(base); rec.TUNE.update(v); bulk.GROUP = rec.TUNE["group"]; bulk.KQ_DELAY = rec.TUNE["kqd"]; bulk.WFLAG = rec.TUNE["wflag"]
        rec.STAMPS = False; build("var%d.s" % i); build("var%d_plain.s" % i, True)
        rec.STAMPS = True; rec.STSET = 0; build("var%d_st.s" % i)
        rec.STSET = 1; build("var%d_s1.s" % i)
        for f in ("var%d_st.s" % i, "var%d_s1.s" % i):
            open(f.replace(".s", "_cy.s"), "w").write(open(f).read().replace("s_memrealtime", "s_memtime"))
```

```python
from fw import *
FL_K, FL_Q, FL_V, FL_U, FL_A = [FLAGS + 0x2000 * i for i in range(5)]
FL_B, FL_F, FL_O = FLAGS + 0xC000, FLAGS + 0xE000, FLAGS + 0x10000
OP2 = OP + 0xA00000
LOG2E = 0x3FB8AA3B
MERGED = False
KQ_DELAY = 0
WFLAG = ""
NEAGER = 4
BST = None
def prologue_common(A):
    A("s_load_dwordx2 s[4:5], s[0:1], %d" % K_WS)
    A("v_and_b32 v1, 63, v0\nv_lshrrev_b32 v2, 6, v0\ns_nop 0\nv_readfirstlane_b32 s3, v2")
    A("s_waitcnt lgkmcnt(0)")

def init_wait(A):
    if not MERGED: return
    L = A.newlabel("IW"); L2 = A.newlabel("ID")
    A("v_mov_b32 v20, 32")
    A.label(L)
    A("global_load_dword v21, v20, s[6:7] sc1\ns_waitcnt vmcnt(0)\nv_cmp_ne_u32 vcc, 64, v21\ns_cbranch_vccz %s\ns_sleep 4" % L2)
    A("s_add_u32 s66, s66, 1\ns_cmp_lt_u32 s66, 0x200000\ns_cbranch_scc1 %s\ns_endpgm" % L)
    A.label(L2)
def dma_src_regs(A, SEG, stride, dst, t0=240):
    n16 = SEG // 16; nph = 32 * n16 // 256
    a, b, c, d = ["v%d" % (t0 + i) for i in range(4)]
    for ph in range(nph):
        A("v_add_u32 %s, %d, v0" % (a, ph * 256))
        if n16 == 24:
            A("v_mul_u32_u24 %s, 2731, %s\nv_lshrrev_b32 %s, 16, %s" % (b, a, b, b))
            A("v_mul_u32_u24 %s, 24, %s\nv_sub_u32 %s, %s, %s" % (c, b, c, a, c))
            A("v_bfe_u32 %s, %s, 1, 2" % (d, b))
        elif n16 == 80:
            A("v_mul_u32_u24 %s, 6554, %s\nv_lshrrev_b32 %s, 19, %s" % (b, a, b, b))
            A("v_mul_u32_u24 %s, 80, %s\nv_sub_u32 %s, %s, %s" % (c, b, c, a, c))
            A("v_and_b32 %s, 7, %s" % (d, b))
        else:
            A("v_lshrrev_b32 %s, 4, %s\nv_and_b32 %s, 15, %s\nv_and_b32 %s, 7, %s" % (b, a, c, a, d, b))
        A("v_lshlrev_b32 %s, 1, %s\nv_xor_b32 %s, %s, %s" % (d, d, c, c, d))
        A("s_mov_b32 s90, %d\nv_mul_lo_u32 %s, %s, s90\nv_lshl_add_u32 v%d, %s, 4, %s" % (stride, b, b, dst + ph, c, b))
    return nph
def tr_addr_reg(A, SEG, blk_sgpr, dst, t0=240):
    a, b = "v%d" % t0, "v%d" % (t0 + 1)
    A("v_lshrrev_b32 %s, 2, v1" % a)
    if SEG == 384: A("v_bfe_u32 %s, %s, 1, 2" % (b, a))
    else: A("v_and_b32 %s, 7, %s" % (b, a))
    A("v_xor_b32 %s, %s, %s\nv_lshlrev_b32 %s, 5, %s" % (b, blk_sgpr, b, b, b))
    A("v_mad_u32_u24 %s, %s, %s, %s" % (b, a, "s91", b))
    A("v_and_b32 %s, 3, v1\nv_lshl_add_u32 v%d, %s, 3, %s" % (a, dst, a, b))
def load_weights(A, SEG, chunks, slots, srcv, trv, tmpv, hook=None):
    load_weights2(A, [dict(SEG=SEG, sb=c[0], step=c[1], dests=c[2], slot=sl, srcv=srcv, trv=trv) for c, sl in zip(chunks, slots)], tmpv, hook=hook)
GROUP = 2
def load_weights2(A, ch, tmpv, group=None, hook=None):
    group = group or GROUP
    n = len(ch)
    prev = [None] * n
    for i in range(n):
        lo, hi = ch[i]["slot"], ch[i]["slot"] + 32 * ch[i]["SEG"]
        for j in range(i - 1, -1, -1):
            if ch[j]["slot"] < hi and lo < ch[j]["slot"] + 32 * ch[j]["SEG"]:
                assert ch[j]["dests"] is not None
                prev[i] = j; break
    A("s_lshl_b32 s92, s3, 10")
    st = dict(issued=0)
    nph = lambda i: ch[i]["SEG"] // 128
    def issue(i):
        c = ch[i]; sb = c["sb"]
        for ph in range(nph(i)):
            A("s_add_u32 m0, s92, %d\ns_nop 0" % (c["slot"] + ph * 4096))
            A.vm("global_load_lds_dwordx4 v%d, %s%s" % (c["srcv"] + ph, sr(sb, 2), WFLAG), ("w", i))
        A("s_add_u32 s%d, s%d, %d\ns_addc_u32 s%d, s%d, 0" % (sb, sb, c["step"], sb + 1, sb + 1))
    def pump(done):
        while st["issued"] < n and (prev[st["issued"]] is None or prev[st["issued"]] < done) and len(A.vm_q) + nph(st["issued"]) <= 60:
            issue(st["issued"]); st["issued"] += 1
    pump(0)
    i = 0
    while i < n:
        if ch[i]["dests"] is None: i += 1; continue
        if st["issued"] <= i:
            A.drain_lds(); A("s_barrier"); pump(i)
        grp = [i]
        while len(grp) < group and grp[-1] + 1 < st["issued"] and ch[grp[-1] + 1]["dests"] is not None and ch[grp[-1] + 1]["SEG"] <= 384 and ch[i]["SEG"] <= 384: grp.append(grp[-1] + 1)
        A.need_vm(("w", grp[-1])); A.drain_lds(); A("s_barrier")
        pump(i)
        if hook: hook(i)
        k = 0
        for j in grp:
            for (ta, dreg) in ch[j]["dests"]:
                A("v_add_u32 v%d, %d, v%d" % (tmpv + k, ch[j]["slot"], ch[j]["trv"] + ta))
                A.lds("ds_read_b64_tr_b16 %s, v%d" % (ur(dreg, 2), tmpv + k))
                A.lds("ds_read_b64_tr_b16 %s, v%d offset:%d" % (ur(dreg + 2, 2), tmpv + k, 16 * ch[j]["SEG"]))
                k = (k + 1) % 4
        i = grp[-1] + 1
    A.drain_lds(); A("s_barrier")
    while st["issued"] < n: issue(st["issued"]); st["issued"] += 1

class Filler:
    def __init__(self): self.q = []
    def add(self, lines):
        for l in lines:
            if l is None: self.q.append(None)
            else:
                for x in l.split("\n"):
                    if x.strip(): self.q.append(x.strip())
    def gap(self, A, n=2):
        k = 0
        while self.q and k < n:
            x = self.q.pop(0)
            if x is None: return
            self.emit(A, x); k += 1
    def flush(self, A):
        while self.q:
            x = self.q.pop(0)
            self.emit(A, x if x is not None else "s_nop 0")
    def emit(self, A, x):
        if x.startswith("ds_"): A.lds(x)
        else: A(x)

def mma_unit(A, NK, NTT, tiles, wreg, accreg, opv, addrv, w_is_A=True, kk0=0, kk1=None, depth=3, first=True, base_off=0,
             fill=None, per_gap=2, pre=False, post=False, opoff=None, head=0):
    if kk1 is None: kk1 = NK
    def rd(kk):
        for tt in range(NTT):
            A.lds("ds_read_b128 %s, v%d offset:%d" % (vr(opv + ((kk % depth) * NTT + tt) * 4, 4), addrv, base_off + (opoff(kk, tt) if opoff else (kk * NTT + tt) * 1024)), ("x", kk, tt))
    lim = min(NK, kk1 + depth - 1) if post else kk1
    if not pre:
        for kk in range(kk0, min(kk0 + depth - 1, lim)): rd(kk)
    if fill and head: fill.gap(A, head)
    for kk in range(kk0, kk1):
        if kk + depth - 1 < lim: rd(kk + depth - 1)
        for tt in range(NTT):
            A.need_lds(("x", kk, tt))
            x = vr(opv + ((kk % depth) * NTT + tt) * 4, 4)
            for t in range(tiles):
                acc = vr(accreg(t, tt), 4); w = ur(wreg(t, kk), 4)
                c = "0" if (kk == 0 and first) else acc
                if w_is_A: A("v_mfma_f32_16x16x32_bf16 %s, %s, %s, %s" % (acc, w, x, c))
                else: A("v_mfma_f32_16x16x32_bf16 %s, %s, %s, %s" % (acc, x, w, c))
                if fill: fill.gap(A, per_gap)

def stream_loop(A, name, NK, NTT, tiles, wreg, acc0, accstride, opv, src_sg, unit_stride, unit_bytes, ustep, uend, epi_ops, flag=None, wait_flag=None,
                w_is_A=True, opoff=None, sc1=False, head=8, eager=False, started=False):
    per = unit_bytes // 4
    nd = per // 1024
    A("v_lshlrev_b32 v3, 4, v1\nv_add_u32 v7, %d, v3" % unit_bytes)
    A("s_mul_i32 s86, s3, %d\nv_add_u32 v4, s86, v3" % per)
    A("s_mov_b32 s46, -1\ns_mov_b32 s47, -1")
    def dma_ops(usg, buf):
        o = ["s_mul_i32 s48, %s, %d" % (usg, unit_stride), "s_add_u32 s48, s48, %s" % src_sg, "s_add_u32 s50, s4, s48", "s_addc_u32 s51, s5, 0"]
        for i in range(nd):
            if i % 4 == 0:
                if i: o += ["s_add_u32 s50, s50, 4096", "s_addc_u32 s51, s51, 0"]
                o += ["s_add_u32 m0, s86, %d" % (buf * unit_bytes + i * 1024), "s_nop 0"]
            o += ["global_load_lds_dwordx4 v4, s[50:51] offset:%d%s" % ((i % 4) * 1024, " sc1" if sc1 else "")]
        return o
    def spaced(ops, n):
        o = []
        for l in ops:
            o.append(l)
            if l and l.startswith("global_"): o += [None] * n
        return o
    Lend = name + "_end"
    A("s_cmp_ge_u32 s44, %s\ns_cbranch_scc1 %s" % (uend, Lend))
    if not started:
        if wait_flag: wait_flag("s44")
        for l in dma_ops("s44", 0): A(l)
    accf = [lambda t, tt, z=z: acc0(t, tt) + z * accstride for z in range(2)]
    def body(z, first):
        A("s_waitcnt vmcnt(0)\ns_barrier")
        if flag and not first: flag("s47")
        A("s_add_u32 s52, s44, %d\ns_cmp_ge_u32 s52, %s\ns_cselect_b32 s54, s44, s52" % (ustep, uend))
        late = first and eager and wait_flag
        if wait_flag and not late: wait_flag("s54")
        F = Filler()
        if not first: F.add(spaced(epi_ops(accf[z ^ 1], "s46"), 3))
        if not late: F.add(spaced(dma_ops("s54", z ^ 1), 3))
        A.lds_q = []
        if not (first and started): mma_unit(A, NK, NTT, tiles, wreg, accf[z], opv, 3 if z == 0 else 7, fill=F, per_gap=2, w_is_A=w_is_A, opoff=opoff, head=0 if first else head)
        F.flush(A)
        Le = None
        if eager and not first:
            Le = A.newlabel("EG"); A("s_cmp_ge_u32 s44, %d\ns_cbranch_scc1 %s" % (NEAGER, Le))
        if eager:
            A("s_nop 7")
            for l in epi_ops(accf[z], "s44"):
                if l: A(l)
            A("s_waitcnt vmcnt(0)\ns_barrier")
            flag("s44")
            if late:
                wait_flag("s54")
                for l in dma_ops("s54", z ^ 1): A(l)
        if Le: A.label(Le)
        A("s_mov_b32 s47, s46\ns_mov_b32 s46, s44\ns_mov_b32 s44, s52")
    body(0, True)
    A("s_cmp_ge_u32 s44, %s\ns_cbranch_scc1 %s_fin0" % (uend, name))
    A.label(name + "_loop")
    body(1, False)
    A("s_cmp_ge_u32 s44, %s\ns_cbranch_scc1 %s_fin1" % (uend, name))
    body(0, False)
    A("s_cmp_lt_u32 s44, %s\ns_cbranch_scc1 %s_loop" % (uend, name))
    for z in range(2):
        A.label("%s_fin%d" % (name, z))
        A("s_nop 7")
        for l in epi_ops(accf[z], "s46"):
            if l: A(l)
        if z == 0: A("s_branch %s_tail" % name)
    A.label(name + "_tail")
    A("s_waitcnt vmcnt(0)\ns_barrier")
    if flag: flag("s47"); flag("s46")
    A.label(Lend)

def mask_wait(A, vaddrs, msg=84):
    def f(usg):
        L = A.newlabel("MW"); L2 = A.newlabel("MD")
        A.label(L)
        A("s_bitcmp1_b64 s[%d:%d], %s\ns_cbranch_scc1 %s" % (msg, msg + 1, usg, L2))
        for k, (va, off) in enumerate(vaddrs): A("global_load_dword v%d, v%d, s[4:5] offset:%d sc1" % (20 + k, va, off))
        A("s_waitcnt vmcnt(0)")
        for k in range(1, len(vaddrs)): A("v_and_b32 v20, v20, v%d" % (20 + k))
        A("v_cmp_eq_u32 s[%d:%d], 1, v20\ns_sleep 2" % (msg, msg + 1))
        A("s_add_u32 s66, s66, 1\ns_cmp_lt_u32 s66, 0x200000\ns_cbranch_scc1 %s\ns_endpgm" % L)
        A.label(L2)
    return f

def flag_store(A, base_sg, shift=2):
    def f(usg):
        L = A.newlabel("FS")
        A("s_cmp_eq_u32 %s, -1\ns_cbranch_scc1 %s\ns_cmp_lg_u32 s3, 0\ns_cbranch_scc1 %s" % (usg, L, L))
        A("s_lshl_b32 s48, %s, %d\ns_add_u32 s48, s48, %s" % (usg, shift, base_sg))
        A("v_mov_b32 v5, s48\nv_mov_b32 v6, 1\ns_mov_b64 exec, 1")
        A("global_store_dword v5, v6, s[4:5] sc1\ns_mov_b64 exec, -1")
        A.label(L)
    return f

RING12 = [i * 12288 for i in range(13)]
RING8 = [i * 8192 for i in range(20)]
def role_proj(A, bsg):
    A.c("==== role PROJ")
    A("s_load_dwordx4 s[8:11], s[0:1], %d\ns_load_dwordx2 s[14:15], s[0:1], %d" % (K_WQ, K_WV))
    A("s_lshr_b32 s41, %s, 5\ns_and_b32 s42, %s, 31\ns_mov_b32 s44, 0" % (bsg, bsg))
    dma_src_regs(A, 384, 12288, 8)
    A("s_mov_b32 s91, 384\ns_mul_i32 s54, s3, 3\ns_and_b32 s55, s3, 1")
    A("s_add_u32 s56, s54, s55"); tr_addr_reg(A, 384, "s56", 12)
    A("s_add_u32 s56, s56, 1"); tr_addr_reg(A, 384, "s56", 13)
    A("s_add_u32 s56, s54, 2\ns_cmp_eq_u32 s55, 1\ns_cselect_b32 s56, s54, s56"); tr_addr_reg(A, 384, "s56", 14)
    A("s_waitcnt lgkmcnt(0)")
    A("s_cmp_eq_u32 s41, 0\ns_cselect_b32 s12, s10, s8\ns_cselect_b32 s13, s11, s9\ns_mov_b32 s57, 0x%x\ns_cselect_b32 s57, 0x%x, s57" % (QT, KT))
    A("s_cmp_eq_u32 s41, 2\ns_cselect_b32 s12, s14, s12\ns_cselect_b32 s13, s15, s13\ns_cselect_b32 s57, 0x%x, s57" % VT)
    A("s_mul_i32 s48, s42, 384\ns_add_u32 s12, s12, s48\ns_addc_u32 s13, s13, 0")
    W0 = 256
    wreg = lambda t, kk: W0 + (t * 20 + kk) * 4
    A.vm_q = []; A.lds_q = []
    ACC, OPV, PK = 32, 80, 104
    X0 = 9 * 12288
    prog = dict(k=0)
    def run_mma(upto):
        if upto > prog["k"]:
            q = A.lds_q; A.lds_q = []
            mma_unit(A, 20, 2, 3, wreg, lambda t, tt: ACC + (t * 2 + tt) * 4, OPV, 104, kk0=prog["k"], kk1=upto)
            A.lds_q = q; prog["k"] = upto
    def hook(i):
        if i == 6 and MERGED:
            A("v_mov_b32 v106, 32"); A.vm("global_load_dword v107, v106, s[6:7] sc1", "iw")
        if i == 10:
            if MERGED:
                L = A.newlabel("PI")
                A.need_vm("iw"); A("v_cmp_ne_u32 vcc, 64, v107\ns_cbranch_vccz %s" % L)
                init_wait(A); A.label(L)
            A("v_lshlrev_b32 v104, 4, v1\ns_mul_i32 s48, s3, 10240\nv_add_u32 v105, s48, v104\nv_add_u32 v104, %d, v104\ns_add_u32 s48, s48, %d\ns_mov_b64 s[50:51], s[4:5]" % (X0, X0))
            for n in range(10):
                if n % 4 == 0:
                    if n: A("s_add_u32 s50, s50, 4096\ns_addc_u32 s51, s51, 0")
                    A("s_add_u32 m0, s48, %d\ns_nop 0" % (n * 1024))
                A.vm("global_load_lds_dwordx4 v105, s[50:51] offset:%d sc1" % ((n % 4) * 1024), "x0")
        if i == 14: A.need_vm("x0")
        if i >= 16: run_mma(min(i, prog["k"] + 8))
    if KQ_DELAY:
        L = A.newlabel("KD")
        A("s_cmp_eq_u32 s41, 2\ns_cbranch_scc1 %s" % L)
        for n in range(KQ_DELAY): A("s_sleep 127")
        A.label(L)
    load_weights(A, 384, [(12, 32 * 12288, [(t, wreg(t, kk)) for t in range(3)]) for kk in range(20)], [RING12[i % 9] for i in range(20)], 8, 12, 16, hook=hook)
    run_mma(20)
    A("s_mul_i32 s48, s42, 12288\ns_add_u32 s57, s57, s48")
    A("s_add_u32 s56, s54, s55\ns_lshr_b32 s56, s56, 1\ns_lshl_b32 s56, s56, 10")
    A("v_lshlrev_b32 v8, 4, v1\nv_add_u32 v8, s56, v8")
    A("s_lshr_b32 s56, s3, 1\ns_mul_i32 s56, s56, 3072\ns_add_u32 s56, s56, 1024\ns_lshl_b32 s55, s55, 3\ns_add_u32 s56, s56, s55")
    A("v_lshlrev_b32 v9, 4, v1\nv_add_u32 v9, s56, v9")
    A("v_add_u32 v10, 6144, v8\nv_add_u32 v11, 6144, v9")
    A("s_lshl_b32 s58, %s, 8\ns_add_u32 s58, s58, 0x%x\ns_mov_b32 s59, 0x%x" % (bsg, FL_K, XOP))
    def epi(acc, usg):
        o = ["s_mul_i32 s60, %s, %d" % (usg, 32 * 12288), "s_add_u32 s60, s60, s57", "s_add_u32 s62, s4, s60", "s_addc_u32 s63, s5, 0"]
        for tt in range(2):
            p = PK + tt * 8
            for t in range(3):
                a = acc(t, tt)
                o += ["v_cvt_pk_bf16_f32 v%d, v%d, v%d" % (p + 2 * t, a, a + 1), "v_cvt_pk_bf16_f32 v%d, v%d, v%d" % (p + 2 * t + 1, a + 2, a + 3)]
            o += ["global_store_dwordx4 v%d, %s, s[62:63] sc1" % (8 + 2 * tt, vr(p, 4)), "global_store_dwordx2 v%d, %s, s[62:63] sc1" % (9 + 2 * tt, vr(p + 4, 2))]
        return o
    stream_loop(A, "PROJ", 20, 2, 3, wreg, lambda t, tt: ACC + (t * 2 + tt) * 4, 24, OPV, "s59", 40960, 40960, 1, "64", epi, flag=flag_store(A, "s58"), eager=True, started=True, sc1=True)
def role_ug(A, bsg):
    A.c("==== role UG")
    A("s_load_dwordx2 s[12:13], s[0:1], %d" % K_WO)
    A("s_and_b32 s42, %s, 31\ns_mov_b32 s44, 0" % bsg)
    dma_src_regs(A, 1280, 1280, 24)
    A("s_mov_b32 s91, 1280\ns_mul_i32 s56, s3, 10")
    for t in range(10):
        tr_addr_reg(A, 1280, "s56", 36 + t); A("s_add_u32 s56, s56, 1")
    A("s_waitcnt lgkmcnt(0)")
    A("s_mul_i32 s48, s42, 245760\ns_add_u32 s12, s12, s48\ns_addc_u32 s13, s13, 0")
    W0 = 256
    wreg = lambda t, kk: W0 + (t * 6 + kk) * 4
    A.vm_q = []; A.lds_q = []
    load_weights(A, 1280, [(12, 32 * 1280, [(t, wreg(t, kk)) for t in range(10)]) for kk in range(6)], [(i % 4) * 40960 for i in range(6)], 24, 36, 48)
    A("s_mul_i32 s57, s42, 40960\ns_mul_i32 s48, s3, 10240\ns_add_u32 s57, s57, s48\ns_add_u32 s57, s57, 0x%x" % UT)
    A("v_lshlrev_b32 v8, 4, v1\nv_add_u32 v9, 4096, v8\nv_add_u32 v10, 8192, v8")
    A("s_lshl_b32 s58, s42, 8\ns_add_u32 s48, s58, 0x%x\ns_add_u32 s58, s58, 0x%x\nv_lshlrev_b32 v11, 2, v1\nv_add_u32 v11, s48, v11" % (FL_V, FL_U))
    A("s_mul_i32 s59, s42, 12288\ns_add_u32 s59, s59, 0x%x\ns_mov_b64 s[84:85], 0" % VT)
    init_wait(A)
    ACC, OPV, PK = 24, 184, 208
    def epi(acc, usg):
        o = ["s_mul_i32 s60, %s, %d" % (usg, 32 * 40960), "s_add_u32 s60, s60, s57", "s_add_u32 s62, s4, s60", "s_addc_u32 s63, s5, 0"]
        for t in range(10):
            p = PK + (t % 4) * 4
            for tt in range(2):
                a = acc(t, tt)
                o += ["v_cvt_pk_bf16_f32 v%d, v%d, v%d" % (p + 2 * tt, a, a + 1), "v_cvt_pk_bf16_f32 v%d, v%d, v%d" % (p + 2 * tt + 1, a + 2, a + 3)]
            o += ["global_store_dwordx4 v%d, %s, s[62:63] offset:%d sc1" % (8 + t // 4, vr(p, 4), (t % 4) * 1024)]
        return o
    stream_loop(A, "UG", 6, 2, 10, wreg, lambda t, tt: ACC + (t * 2 + tt) * 4, 80, OPV, "s59", 32 * 12288, 12288, 1, "64", epi, flag=flag_store(A, "s58"),
                wait_flag=mask_wait(A, [(11, 0)]), w_is_A=False, opoff=lambda kk, tt: tt * 6144 + kk * 1024, sc1=True, eager=True)
def role_ffn1(A, bsg, ngroups=10):
    A.c("==== role FFN1")
    A("s_cmp_ge_u32 %s, %d\ns_cbranch_scc1 FFN1_end" % (bsg, 12 * ngroups))
    A("s_load_dwordx4 s[8:11], s[0:1], %d" % K_WG)
    A("s_mul_i32 s44, %s, 5462\ns_lshr_b32 s44, s44, 16\ns_mul_i32 s48, s44, 12\ns_sub_u32 s42, %s, s48" % (bsg, bsg))
    dma_src_regs(A, 256, 3072, 8, t0=20)
    A("s_mov_b32 s91, 256\ns_lshl_b32 s56, s3, 1"); tr_addr_reg(A, 256, "s56", 12, t0=20)
    A("s_add_u32 s56, s56, 1"); tr_addr_reg(A, 256, "s56", 13, t0=20)
    A("s_waitcnt lgkmcnt(0)")
    A("s_lshl_b32 s48, s42, 8\ns_add_u32 s8, s8, s48\ns_addc_u32 s9, s9, 0\ns_add_u32 s10, s10, s48\ns_addc_u32 s11, s11, 0")
    W0 = 192
    wreg = lambda t, kk: W0 + (t * 20 + kk) * 4
    ch = []
    for kk in range(20):
        for m in range(2): ch.append((8 + 2 * m, 32 * 3072, [(t, wreg(2 * m + t, kk)) for t in range(2)]))
    A.vm_q = []; A.lds_q = []
    load_weights(A, 256, ch, [RING8[i % 20] for i in range(40)], 8, 12, 16)
    A("s_lshl_b32 s48, s42, 2\ns_add_u32 s48, s48, s3\ns_lshl_b32 s48, s48, 10")
    A("v_lshlrev_b32 v8, 4, v1\nv_add_u32 v8, s48, v8\nv_add_u32 v9, 49152, v8")
    A("s_lshl_b32 s58, s42, 2\ns_add_u32 s58, s58, 0x%x" % FL_A)
    A("s_mov_b32 s57, 0x%08x\ns_mov_b32 s59, 0x%x" % (LOG2E | 0x80000000, XOP))
    ACC, OPV, PK, T = 32, 96, 120, 128
    def epi(acc, usg):
        o = ["s_mul_i32 s60, %s, 98304" % usg, "s_add_u32 s60, s60, 0x%x" % ACT, "s_add_u32 s62, s4, s60", "s_addc_u32 s63, s5, 0"]
        for tt in range(2):
            for t in range(2):
                g = acc(t, tt); u = acc(2 + t, tt)
                o += ["v_mul_f32 v%d, s57, v%d" % (T + r, g + r) for r in range(4)]
                o += ["v_exp_f32 v%d, v%d" % (T + r, T + r) for r in range(4)]
                o += ["v_mul_f32 v%d, v%d, v%d" % (g + r, g + r, u + r) for r in range(4)]
                o += ["v_add_f32 v%d, 1.0, v%d" % (T + r, T + r) for r in range(4)]
                o += ["v_rcp_f32 v%d, v%d" % (T + r, T + r) for r in range(4)]
                o += ["s_nop 0"]
                o += ["v_mul_f32 v%d, v%d, v%d" % (g + r, g + r, T + r) for r in range(4)]
                p = PK + tt * 4 + 2 * t
                o += ["v_cvt_pk_bf16_f32 v%d, v%d, v%d" % (p, g, g + 1), "v_cvt_pk_bf16_f32 v%d, v%d, v%d" % (p + 1, g + 2, g + 3)]
            o += ["global_store_dwordx4 v%d, %s, s[62:63] sc1" % (8 + tt, vr(PK + tt * 4, 4))]
        return o
    stream_loop(A, "FFN1", 20, 2, 4, wreg, lambda t, tt: ACC + (t * 2 + tt) * 4, 32, OPV, "s59", 40960, 40960, ngroups, "64", epi, flag=flag_store(A, "s58", 6), sc1=True)
def role_ffn2(A, bsg, ngroups=25):
    A.c("==== role FFN2")
    A("s_cmp_ge_u32 %s, %d\ns_cbranch_scc1 FFN2_end" % (bsg, 5 * ngroups))
    A("s_load_dwordx2 s[8:9], s[0:1], %d\ns_load_dwordx2 s[10:11], s[0:1], %d" % (K_WD, K_X))
    A("s_mul_i32 s44, %s, 13108\ns_lshr_b32 s44, s44, 16\ns_mul_i32 s48, s44, 5\ns_sub_u32 s42, %s, s48" % (bsg, bsg))
    dma_src_regs(A, 256, 1280, 8, t0=20)
    A("s_mov_b32 s91, 256\ns_lshl_b32 s56, s3, 1"); tr_addr_reg(A, 256, "s56", 12, t0=20)
    A("s_add_u32 s56, s56, 1"); tr_addr_reg(A, 256, "s56", 13, t0=20)
    A("s_waitcnt lgkmcnt(0)")
    A("s_lshl_b32 s48, s42, 8\ns_add_u32 s8, s8, s48\ns_addc_u32 s9, s9, 0")
    W0 = 128
    wreg = lambda t, kk: W0 + (t * 48 + kk) * 4
    A.vm_q = []; A.lds_q = []
    load_weights(A, 256, [(8, 32 * 1280, [(t, wreg(t, kk)) for t in range(2)]) for kk in range(48)], [RING8[i % 20] for i in range(48)], 8, 12, 16)
    A("s_lshl_b32 s48, s42, 8\ns_lshl_b32 s49, s3, 6\ns_add_u32 s48, s48, s49")
    A("v_and_b32 v8, 15, v1\nv_mul_u32_u24 v8, 1280, v8\nv_lshrrev_b32 v9, 4, v1\nv_lshl_add_u32 v8, v9, 3, v8\nv_add_u32 v8, s48, v8")
    A("s_lshl_b32 s48, s48, 5\nv_lshlrev_b32 v9, 4, v1\nv_add_u32 v9, s48, v9\ns_mov_b32 s59, 0x%x" % ACT)
    A("s_lshl_b32 s58, s42, 2\ns_add_u32 s58, s58, 0x%x" % FL_B)
    ACC, OPV, XV = 32, 64, 96
    def epi(acc, usg):
        o = ["s_mul_i32 s60, %s, 20480" % usg, "s_add_u32 s62, s10, s60", "s_addc_u32 s63, s11, 0",
             "global_load_dwordx2 v[%d:%d], v8, s[62:63]" % (XV, XV + 1), "global_load_dwordx2 v[%d:%d], v8, s[62:63] offset:32" % (XV + 2, XV + 3),
             "s_mul_i32 s60, %s, 40960" % usg, "s_add_u32 s60, s60, 0x%x" % BASE, "s_add_u32 s62, s4, s60", "s_addc_u32 s63, s5, 0"] + [None] * 16 + ["s_waitcnt vmcnt(0)"]
        for t in range(2):
            a = acc(t, 0)
            for p in range(2):
                o += ["v_lshlrev_b32 v100, 16, v%d" % (XV + 2 * t + p), "v_and_b32 v101, 0xffff0000, v%d" % (XV + 2 * t + p),
                      "v_add_f32 v%d, v%d, v100" % (a + 2 * p, a + 2 * p), "v_add_f32 v%d, v%d, v101" % (a + 2 * p + 1, a + 2 * p + 1)]
            o += ["global_store_dwordx4 v9, %s, s[62:63] offset:%d sc1" % (vr(a, 4), t * 1024)]
        return o
    def wait_flag(usg):
        L = A.newlabel("WA"); L2 = A.newlabel("WB")
        A("s_lshr_b32 s48, %s, 1\ns_lshl_b32 s48, s48, 6\ns_add_u32 s48, s48, 0x%x" % (usg, FL_A))
        A("v_min_u32 v5, 11, v1\nv_lshlrev_b32 v5, 2, v5\nv_add_u32 v5, s48, v5")
        A.label(L)
        A("global_load_dword v6, v5, s[4:5] sc1\ns_waitcnt vmcnt(0)\nv_cmp_ne_u32 vcc, 1, v6\ns_cbranch_vccz %s\ns_sleep 8" % L2)
        A("s_add_u32 s66, s66, 1\ns_cmp_lt_u32 s66, 0x200000\ns_cbranch_scc1 %s\ns_endpgm" % L)
        A.label(L2)
    stream_loop(A, "FFN2", 48, 1, 2, wreg, lambda t, tt: ACC + t * 4, 8, OPV, "s59", 49152, 49152, ngroups, "128", epi, wait_flag=wait_flag, sc1=True, head=4, flag=flag_store(A, "s58", 5))
def role_fin(A, bsg):
    A.c("==== role FIN")
    A("s_load_dwordx2 s[8:9], s[0:1], %d" % K_OUT)
    def wait(base_expr_ops, nent, lab, n=1):
        for l in base_expr_ops: A(l)
        A("v_min_u32 v8, %d, v1\nv_lshlrev_b32 v8, 2, v8\nv_add_u32 v8, s48, v8" % (nent - 1))
        A.label(lab)
        for k in range(n): A("global_load_dword v%d, v8, s[4:5] offset:%d sc1" % (12 + k, 256 * k))
        A("s_waitcnt vmcnt(0)")
        for k in range(1, n): A("v_and_b32 v12, v12, v%d" % (12 + k))
        A("v_cmp_ne_u32 vcc, 1, v12\ns_cbranch_vccz %sd\ns_sleep 4" % lab)
        A("s_add_u32 s66, s66, 1\ns_cmp_lt_u32 s66, 0x200000\ns_cbranch_scc1 %s\ns_endpgm" % lab)
        A.label(lab + "d")
    wait(["s_lshl_b32 s48, %s, 5" % bsg, "s_add_u32 s48, s48, 0x%x" % FL_B], 5, "FIN_wb")
    A("s_mul_i32 s48, %s, 40960\ns_mul_i32 s49, s3, 10240\ns_add_u32 s48, s48, s49\ns_lshr_b32 s49, s48, 1\ns_add_u32 s48, s48, 0x%x\ns_add_u32 s49, s49, 0x%x" % (bsg, BASE, OP2))
    A("s_add_u32 s12, s4, s48\ns_addc_u32 s13, s5, 0\ns_add_u32 s14, s4, s49\ns_addc_u32 s15, s5, 0\nv_lshlrev_b32 v3, 4, v1\nv_lshlrev_b32 v4, 3, v1\nv_add_u32 v5, 4096, v4")
    for c in range(10):
        A("global_load_dwordx4 %s, v3, s[12:13] offset:%d sc1" % (vr(24 + 4 * c, 4), (c % 4) * 1024))
        if c % 4 == 3: A("s_add_u32 s12, s12, 4096\ns_addc_u32 s13, s13, 0")
    A("s_cmp_ge_u32 %s, 124\ns_cbranch_scc1 FIN_last" % bsg)
    wait(["s_lshr_b32 s48, %s, 1" % bsg, "s_lshl_b32 s48, s48, 4", "s_add_u32 s48, s48, 0x%x" % FL_F], 4, "FIN_wo")
    A("s_branch FIN_ld")
    A.label("FIN_last")
    A("s_sub_u32 s14, s14, 0x%x\ns_subb_u32 s15, s15, 0" % (OP2 - OP))
    wait(["s_lshr_b32 s48, %s, 1" % bsg, "s_lshl_b32 s48, s48, 10", "s_add_u32 s48, s48, 0x%x" % FL_O], 40, "FIN_wl", 4)
    A.label("FIN_ld")
    for p in range(4):
        for c in range(10): A("global_load_dwordx2 %s, v%d, s[14:15] offset:%d sc1" % (vr(64 + (p * 10 + c) * 2, 2), 4 if c < 8 else 5, (c % 8) * 512))
        if p < 3: A("s_add_u32 s14, s14, 2621440\ns_addc_u32 s15, s15, 0")
    A("s_mul_i32 s48, %s, 20480\ns_mul_i32 s49, s3, 320\ns_add_u32 s48, s48, s49\ns_add_u32 s8, s8, s48\ns_addc_u32 s9, s9, 0" % bsg)
    A("v_and_b32 v6, 15, v1\nv_mul_u32_u24 v6, 1280, v6\nv_lshrrev_b32 v7, 4, v1\nv_lshl_add_u32 v6, v7, 3, v6")
    for p in range(4):
        A("s_waitcnt vmcnt(%d)" % ((3 - p) * 10))
        for c in range(10):
            for h in range(2):
                r = 64 + (p * 10 + c) * 2 + h; a = 24 + 4 * c + 2 * h
                A("v_lshlrev_b32 v16, 16, v%d\nv_and_b32 v17, 0xffff0000, v%d\nv_pk_add_f32 v[%d:%d], v[%d:%d], v[16:17]" % (r, r, a, a + 1, a, a + 1))
    for c in range(10):
        a = 24 + 4 * c
        A("v_cvt_pk_bf16_f32 v%d, v%d, v%d\nv_cvt_pk_bf16_f32 v%d, v%d, v%d" % (a, a, a + 1, a + 1, a + 2, a + 3))
        A("global_store_dwordx2 v6, v[%d:%d], s[8:9] offset:%d" % (a, a + 1, c * 32))
```

```python
import re
class Asm:
    def __init__(self):
        self.l = []
        self.uid = 0
        self.lds_q = []
        self.vm_q = []
    def __call__(self, s):
        for x in s.split("\n"):
            x = x.strip()
            if x: self.l.append(x)
    def label(self, name): self.l.append(name + ":")
    def newlabel(self, p="L"):
        self.uid += 1
        return "%s_%d" % (p, self.uid)
    def c(self, s): self.l.append("; " + s)
    def lds(self, s, tag=None):
        self(s); self.lds_q.append(tag)
    def need_lds(self, tag):
        if tag not in self.lds_q: return
        i = len(self.lds_q) - 1 - self.lds_q[::-1].index(tag)
        n = len(self.lds_q) - 1 - i
        self("s_waitcnt lgkmcnt(%d)" % min(n, 15))
        if n <= 15: self.lds_q = self.lds_q[i+1:]
        else: self.lds_q = self.lds_q[len(self.lds_q)-15:]
    def drain_lds(self):
        self("s_waitcnt lgkmcnt(0)"); self.lds_q = []
    def vm(self, s, tag=None):
        if len(self.vm_q) >= 62:
            self("s_waitcnt vmcnt(40)"); self.vm_q = self.vm_q[len(self.vm_q)-40:]
        self(s); self.vm_q.append(tag)
    def need_vm(self, tag):
        if tag not in self.vm_q: return
        i = len(self.vm_q) - 1 - self.vm_q[::-1].index(tag)
        n = len(self.vm_q) - 1 - i
        self("s_waitcnt vmcnt(%d)" % n)
        self.vm_q = self.vm_q[i+1:]
    def drain_vm(self):
        self("s_waitcnt vmcnt(0)"); self.vm_q = []
    def text(self): return "\n".join(("" if x.endswith(":") or x.startswith(".") or x.startswith(";") else "  ") + x for x in self.l) + "\n"

def vr(b, n=1):
    return "v%d" % b if n == 1 else "v[%d:%d]" % (b, b + n - 1)
def ar(b, n=1):
    return "a%d" % b if n == 1 else "a[%d:%d]" % (b, b + n - 1)
def sr(b, n=1):
    return "s%d" % b if n == 1 else "s[%d:%d]" % (b, b + n - 1)
def ur(b, n=1):
    if b >= 256: return ar(b - 256, n)
    assert b + n <= 256
    return vr(b, n)

def kernel_head(A, name):
    A.l.append(".text"); A.l.append(".globl %s" % name); A.l.append(".p2align 8"); A.l.append(".type %s,@function" % name)
    A.label(name)
def kernel_desc(name, vgpr, sgpr=102, accum=None):
    if accum is None: accum = min(256, (vgpr + 3) // 4 * 4)
    return ('.section .rodata,"a"\n.p2align 6\n.amdhsa_kernel %s\n  .amdhsa_next_free_vgpr %d\n  .amdhsa_next_free_sgpr %d\n  .amdhsa_accum_offset %d\n'
            '  .amdhsa_group_segment_fixed_size 0\n  .amdhsa_kernarg_size 112\n  .amdhsa_user_sgpr_count 2\n  .amdhsa_user_sgpr_kernarg_segment_ptr 1\n'
            '  .amdhsa_system_sgpr_workgroup_id_x 1\n.end_amdhsa_kernel\n') % (name, vgpr, sgpr, accum)

XOP   = 0x0000000
ACT   = 0x0300000
BASE  = 0x0A00000
MEMB  = 0x1000000
PM    = 0x1300000
PT    = 0x1310000
XL    = 0x1360000
FLAGS = 0x1360000
XR    = 0x1400000
BW    = 0x1800000
YB    = 0x1800000
KT    = 0x3400000
QT    = 0x4C00000
OP    = 0x6400000
VT    = 0x7800000
UT    = 0x9000000
STB   = 0xE800000
K_X, K_MEM0, K_WQ, K_WK, K_WV, K_WO, K_SEG, K_BX, K_WG, K_WU, K_WD, K_OUT, K_DBG, K_WS = [8*i for i in range(14)]

def code_touch(A, end_label, nbytes_max, vdst=250, sb=96, start_label=None):
    L = A.newlabel("PC")
    A("s_getpc_b64 s[%d:%d]" % (sb, sb + 1))
    A.label(L)
    ref = L
    if start_label:
        A("s_add_u32 s%d, s%d, %s-%s\ns_addc_u32 s%d, s%d, 0" % (sb, sb, start_label, L, sb + 1, sb + 1)); ref = start_label
    A("v_lshlrev_b32 v%d, 7, v0" % vdst)
    n = (nbytes_max + 32767) // 32768
    for i in range(n):
        A("v_min_u32 v%d, %s-%s-4, v%d\nglobal_load_dword v%d, v%d, s[%d:%d]" % (vdst + 1, end_label, ref, vdst, 252, vdst + 1, sb, sb + 1))
        if i < n - 1: A("v_add_u32 v%d, 32768, v%d" % (vdst, vdst))
```

```python
import re, sys
def regs(tok):
    tok = tok.strip().lstrip("-").replace("abs(","").replace(")","").replace("|","")
    m = re.fullmatch(r"([vas])(\d+)", tok)
    if m: return {(m.group(1), int(m.group(2)))}
    m = re.fullmatch(r"([vas])\[(\d+):(\d+)\]", tok)
    if m: return {(m.group(1), i) for i in range(int(m.group(2)), int(m.group(3)) + 1)}
    if tok == "vcc": return {("s", 106), ("s", 107)}
    if tok == "exec": return {("s", 126), ("s", 127)}
    if tok == "m0": return {("s", 124)}
    return set()
TRANS = ("v_exp_f32","v_log_f32","v_rcp_f32","v_rsq_f32","v_sqrt_f32","v_sin_f32","v_cos_f32")
def parse(line):
    line = line.split(";")[0].strip()
    if not line or line.endswith(":") or line.startswith("."): return None
    p = line.split(None, 1)
    op = p[0]; ops = []
    if len(p) > 1:
        ops = [x.strip() for x in re.split(r",\s*", p[1])]
        last = ops[-1].split()
        ops[-1] = last[0] if last else ""
        mods = " ".join(last[1:])
    else: mods = ""
    d = dict(op=op, ops=ops, mods=mods, text=line)
    R = [regs(o) for o in ops]
    W = set(); RD = set()
    kind = "other"
    if op.startswith("v_mfma") or op.startswith("v_smfmac"):
        kind = "mfma"; W = R[0]; RD = R[1] | R[2] | (R[3] if len(R) > 3 else set())
        d["A"] = R[1]; d["B"] = R[2]
        if op.startswith("v_smfmac"): d["C"] = R[0]; d["B"] = R[2] | R[3]; RD |= R[0]
        else: d["C"] = R[3]
        d["passes"] = 8 if "32x32" in op else 4
    elif op.startswith("v_"):
        kind = "valu"
        if op.startswith("v_cmp"):
            W = R[0]; RD = set().union(*R[1:])
            if op.startswith("v_cmpx"): W = W | regs("exec")
        elif op.startswith("v_permlane") and "swap" in op:
            W = R[0] | R[1]; RD = R[0] | R[1]
        elif op in ("v_readfirstlane_b32", "v_readlane_b32"):
            W = R[0]; RD = set().union(*R[1:])
        elif "_co_" in op:
            W = R[0] | R[1]; RD = set().union(*R[2:])
        else:
            W = R[0]; RD = set().union(*R[1:]) if len(R) > 1 else set()
            if op.startswith("v_fmac") or op.startswith("v_dot2c") or op.startswith("v_writelane"): RD |= R[0]
            if op.startswith("v_cndmask") and len(R) == 3: RD |= regs("vcc")
    elif op.startswith("ds_"):
        kind = "ds"
        if op.startswith("ds_read") or op.startswith("ds_bpermute") or op.startswith("ds_swizzle"):
            W = R[0]; RD = set().union(*R[1:])
        else: RD = set().union(*R)
    elif op.startswith("global_") or op.startswith("buffer_"):
        kind = "vmem"
        if "load_lds" in op or "lds" in mods.split(): RD = set().union(*R) | regs("m0"); d["dma"] = True
        elif "load" in op: W = R[0]; RD = set().union(*R[1:])
        elif "atomic" in op and "sc0" in mods.split(): W = R[0]; RD = set().union(*R[1:])
        else:
            RD = set().union(*R) if R else set()
            if "store_dwordx4" in op or "store_dwordx3" in op: d["wide"] = R[1] if op.startswith("global_") else R[0]
    elif op.startswith("s_"):
        kind = "salu"
        if op.startswith("s_nop"): d["nop"] = int(ops[0], 0) + 1
        elif op.startswith(("s_cmp", "s_cbranch", "s_branch", "s_waitcnt", "s_barrier", "s_endpgm", "s_bitcmp", "s_setprio", "s_sleep")): RD = set().union(*R) if R else set()
        else:
            W = R[0] if R else set(); RD = set().union(*R[1:]) if len(R) > 1 else set()
            if "saveexec" in op: W = W | regs("exec")
    d.update(kind=kind, W=W, R=RD)
    return d
def check(text, verbose=True):
    ins = []
    for n, l in enumerate(text.split("\n")):
        p = parse(l)
        if p: p["line"] = n + 1; ins.append(p)
    errs = []
    for i, c in enumerate(ins):
        dist = 0
        for j in range(i - 1, max(-1, i - 24), -1):
            p = ins[j]
            if p["op"] in ("s_endpgm", "s_branch"): break
            need = 0; why = ""
            def upd(n, w):
                nonlocal need, why
                if n > need: need, why = n, w
            if p["kind"] == "mfma":
                n8 = 12 if p["passes"] == 8 else 8
                if c["kind"] == "mfma":
                    if p["W"] & (c["A"] | c["B"]): upd(n8, "mfma D -> mfma A/B")
                    ov = p["W"] & c["C"]
                    if ov and not (p["W"] == c["C"] and p["passes"] == c["passes"]): upd(n8 - 2, "mfma D -> mfma C partial")
                elif c["kind"] in ("valu", "ds", "vmem") and (p["W"] & (c["R"] | c["W"])): upd(n8, "mfma D -> valu/mem")
                if c["kind"] == "valu" and (p["C"] & c["W"]) and not (p["W"] & c["W"]): upd(7 if p["passes"] == 8 else 3, "mfma C WAR")
            if p["kind"] == "valu":
                pv = {r for r in p["W"] if r[0] in "va"}; ps = {r for r in p["W"] if r[0] == "s"}
                if c["kind"] == "mfma" and pv & c["R"]: upd(2, "valu -> mfma")
                if c["kind"] == "mfma" and ("s", 126) in ps: upd(4, "valu exec -> mfma")
                if c["op"].startswith("v_permlane") and pv & c["R"]: upd(2, "valu -> permlane")
                if c["kind"] == "valu" and "dpp" in c["text"] + c["mods"] or "row_" in c["mods"] or "quad_perm" in c["mods"]:
                    if pv & c["R"]: upd(2, "valu -> dpp")
                if c["op"] in ("v_readfirstlane_b32", "v_readlane_b32") and pv & c["R"]: upd(1, "valu -> readlane")
                if c["kind"] == "vmem" and ps & c["R"]: upd(5, "valu sgpr -> vmem")
                if c["kind"] == "valu" and ps & c["R"]: upd(2, "valu sgpr -> valu const")
                if p["op"].startswith(TRANS) and c["kind"] in ("valu","mfma") and not c["op"].startswith(TRANS) and pv & c["R"]: upd(1, "trans -> valu")
            if p["kind"] == "salu" and ("s", 124) in p["W"] and c.get("dma"): upd(1, "m0 -> dma")
            if p.get("wide") and (p["wide"] & c["W"]): upd(2 if c["kind"] == "valu" else 1, "wide store data WAR")
            if need > dist: errs.append((c["line"], p["line"], need, dist, why, p["text"], c["text"]))
            dist += p.get("nop", 1)
    if verbose:
        for e in errs[:40]: print("HAZARD line %d (prod %d) need %d have %d: %s\n    %s\n    %s" % e)
        print("hazard check: %d issues" % len(errs))
    return errs
if __name__ == "__main__":
    check(open(sys.argv[1]).read())
```

```python
from fw import *
CALW = 0x12F0000
N_B, N_LN, N_INIT = 256, 32, 64
K1_GRID = N_B + N_LN + N_INIT + 2
def xsum_g(A, a, t, op="v_add_f32"):
    A("v_mov_b32 %s, %s\ns_nop 1\nv_permlane16_swap_b32 %s, %s\n%s %s, %s, %s" % (t, a, a, t, op, a, a, t))
    A("v_mov_b32 %s, %s\ns_nop 1\nv_permlane32_swap_b32 %s, %s\n%s %s, %s, %s" % (t, a, a, t, op, a, a, t))
def xr_base(A, dst, ws):
    A("s_add_u32 %s, %s, 0x%x" % (dst, ws, XR + 0x1FFFFF))
    A("s_and_b32 %s, %s, 0xFFE00000" % (dst, dst))
    A("s_sub_u32 %s, %s, %s" % (dst, dst, ws))
def gen_k1(A, touch_rest=False):
    kernel_head(A, "prep_kernel")
    code_touch(A, "K1_last", 32768, vdst=5, sb=40)
    A("s_load_dwordx2 s[4:5], s[0:1], %d" % K_WS)
    A("s_load_dwordx4 s[8:11], s[0:1], %d" % K_WV)
    A("s_load_dwordx4 s[12:15], s[0:1], %d" % K_X)
    A("v_and_b32 v1, 63, v0\nv_lshrrev_b32 v2, 6, v0\ns_nop 0\nv_readfirstlane_b32 s3, v2")
    A("s_waitcnt lgkmcnt(0)")
    A("s_cmp_ge_u32 s2, %d\ns_cbranch_scc1 K1_notb" % N_B)
    A("s_and_b32 s16, s2, 7\ns_lshr_b32 s17, s2, 6\ns_lshl_b32 s17, s17, 3\ns_add_u32 s16, s16, s17")
    A("s_bfe_u32 s17, s2, 0x10005")
    A("s_bfe_u32 s18, s2, 0x20003")
    for ph in range(5):
        A("v_add_u32 v3, %d, v1" % (ph * 64))
        A("v_mul_u32_u24 v4, 3277, v3\nv_lshrrev_b32 v4, 16, v4")
        A("v_mul_u32_u24 v5, 20, v4\nv_sub_u32 v5, v3, v5")
        A("v_mul_u32_u24 v4, 1280, v4\nv_lshl_add_u32 v%d, v5, 4, v4" % (10 + ph))
    A("s_mul_i32 s19, s16, 245760\ns_mul_i32 s20, s18, 320\ns_add_u32 s19, s19, s20")
    A("s_mul_i32 s20, s3, %d\ns_add_u32 s19, s19, s20" % (3 * 20480))
    A("s_add_u32 s20, s10, s19\ns_addc_u32 s21, s11, 0")
    A("s_mul_i32 s22, s3, %d" % (3 * 5120))
    for G in range(3):
        for ph in range(5):
            A("s_add_u32 m0, s22, %d\ns_nop 0" % (G * 5120 + ph * 1024))
            A("global_load_lds_dwordx4 v%d, s[20:21]" % (10 + ph))
        if G < 2: A("s_add_u32 s20, s20, 20480\ns_addc_u32 s21, s21, 0")
    A("s_mul_i32 s23, s3, 3\ns_cmp_eq_u32 s3, 3\ns_cselect_b32 s23, 8, s23")
    A("s_mul_i32 s24, s17, 10\ns_add_u32 s23, s23, s24")
    A("v_and_b32 v3, 31, v1\nv_lshrrev_b32 v4, 5, v1")
    A("s_mov_b32 s25, 12288\nv_mul_lo_u32 v5, v3, s25\nv_lshl_add_u32 v5, v4, 4, v5")
    A("s_mul_i32 s24, s23, %d\ns_mul_i32 s25, s16, 384\ns_add_u32 s24, s24, s25" % (32 * 12288))
    A("s_add_u32 s26, s8, s24\ns_addc_u32 s27, s9, 0")
    A("v_lshrrev_b32 v7, 4, v1\nv_and_b32 v8, 1, v7\nv_lshrrev_b32 v7, 1, v7")
    A("v_bfe_u32 v9, v1, 2, 2\nv_lshl_add_u32 v9, v7, 3, v9\nv_mul_u32_u24 v6, 320, v9")
    A("v_lshl_add_u32 v6, v8, 5, v6\nv_and_b32 v9, 3, v1\nv_lshl_add_u32 v6, v9, 3, v6")
    A("s_mov_b32 s25, 163840\nv_mul_lo_u32 v15, v8, s25\nv_lshl_add_u32 v15, v7, 8, v15\nv_and_b32 v9, 15, v1\nv_lshl_add_u32 v15, v9, 4, v15")
    A("s_lshr_b32 s24, s16, 3\ns_mul_i32 s24, s24, 6553600")
    A("s_bfe_u32 s25, s16, 0x10002\ns_mul_i32 s25, s25, 81920\ns_add_u32 s24, s24, s25")
    A("s_and_b32 s25, s16, 3\ns_mul_i32 s25, s25, 20480\ns_add_u32 s24, s24, s25")
    A("s_mul_i32 s25, s18, %d\ns_add_u32 s24, s24, s25" % (5 * 327680))
    A("s_lshl_b32 s25, s23, 10\ns_add_u32 s24, s24, s25\ns_add_u32 s24, s24, 0x%x" % BW)
    A("s_add_u32 s28, s4, s24\ns_addc_u32 s29, s5, 0")
    A("s_cmp_ge_u32 s3, 2\ns_cbranch_scc1 K1_b2")
    AR, ACC, BR, PK = 16, 160, 208, 224
    for nt in (3, 2):
        if nt == 2: A.label("K1_b2")
        for t in range(nt):
            for ks in range(12):
                A("global_load_dwordx4 %s, v5, s[26:27] offset:%d" % (vr(AR + t * 48 + ks * 4, 4), ks * 32))
            if t < nt - 1: A("s_add_u32 s26, s26, %d\ns_addc_u32 s27, s27, 0" % (32 * 12288))
        A("s_waitcnt vmcnt(0)\ns_barrier")
        A.lds_q = []
        seq = [(ci, ks) for ci in range(5) for ks in range(12)]
        def rd(n):
            ci, ks = seq[n]; b = BR + (n % 4) * 4
            A.lds("ds_read_b64_tr_b16 %s, v6 offset:%d" % (vr(b, 2), ks * 5120 + ci * 64), ("b", n, 0))
            A.lds("ds_read_b64_tr_b16 %s, v6 offset:%d" % (vr(b + 2, 2), ks * 5120 + ci * 64 + 1280), ("b", n, 1))
        for n in range(3): rd(n)
        for n, (ci, ks) in enumerate(seq):
            A.need_lds(("b", n, 1))
            b = BR + (n % 4) * 4
            for t in range(nt):
                acc = vr(ACC + 16 * t, 16)
                A("v_mfma_f32_32x32x16_bf16 %s, %s, %s, %s" % (acc, vr(AR + t * 48 + ks * 4, 4), vr(b, 4), "0" if ks == 0 else acc))
            if n + 3 < len(seq): rd(n + 3)
            if ks == 11:
                A("s_nop 11")
                for t in range(nt):
                    p = PK + 8 * (t % 2)
                    for rho in range(4):
                        dst = p + (rho & 1) * 4 + (rho >> 1) * 2
                        a = ACC + 16 * t + 4 * rho
                        A("v_cvt_pk_bf16_f32 v%d, v%d, v%d\nv_cvt_pk_bf16_f32 v%d, v%d, v%d" % (dst, a, a + 1, dst + 1, a + 2, a + 3))
                    A("global_store_dwordx4 v15, %s, s[28:29] offset:%d" % (vr(p, 4), t * 1024))
                    A("global_store_dwordx4 v15, %s, s[28:29] offset:%d" % (vr(p + 4, 4), t * 1024 + 512))
                A("s_add_u32 s28, s28, 327680\ns_addc_u32 s29, s29, 0\ns_nop 1")
        A("s_endpgm")
    A.label("K1_notb")
    A("s_cmp_ge_u32 s2, %d\ns_cbranch_scc1 K1_notln" % (N_B + N_LN))
    A("s_sub_u32 s16, s2, %d\ns_lshl_b32 s16, s16, 2\ns_add_u32 s16, s16, s3" % N_B)
    A("v_and_b32 v3, 15, v1\nv_lshrrev_b32 v4, 4, v1\nv_mul_u32_u24 v5, 1280, v3\nv_lshl_add_u32 v5, v4, 3, v5")
    A("s_mul_i32 s17, s16, %d\ns_add_u32 s20, s12, s17\ns_addc_u32 s21, s13, 0" % (16 * 1280))
    RAW, FP = 176, 16
    for kk in range(20):
        for hf in range(2):
            A("global_load_dwordx2 %s, v5, s[20:21] offset:%d" % (vr(RAW + kk * 4 + hf * 2, 2), kk * 64 + hf * 32))
    A("s_lshr_b32 s17, s16, 1\ns_mul_i32 s17, s17, 40960\ns_and_b32 s18, s16, 1\ns_lshl_b32 s18, s18, 10\ns_add_u32 s17, s17, s18")
    A("s_add_u32 s22, s4, s17\ns_addc_u32 s23, s5, 0")
    A("v_lshlrev_b32 v6, 4, v1")
    A("s_waitcnt vmcnt(0)")
    for i in range(80):
        A("v_lshlrev_b32 v%d, 16, v%d\nv_and_b32 v%d, 0xffff0000, v%d" % (FP + 2 * i, RAW + i, FP + 2 * i + 1, RAW + i))
    for a in range(4): A("v_add_f32 v%d, v%d, v%d" % (8 + a, FP + a, FP + 4 + a))
    for i in range(8, 160): A("v_add_f32 v%d, v%d, v%d" % (8 + i % 4, 8 + i % 4, FP + i))
    A("v_add_f32 v8, v8, v9\nv_add_f32 v10, v10, v11\nv_add_f32 v8, v8, v10")
    xsum_g(A, "v8", "v9")
    A("v_mul_f32 v8, 0x%08x, v8" % 0x3ACCCCCD)
    for i in range(160): A("v_sub_f32 v%d, v%d, v8" % (FP + i, FP + i))
    for a in range(4): A("v_mul_f32 v%d, v%d, v%d" % (8 + a, FP + a, FP + a))
    for i in range(4, 160): A("v_fmac_f32 v%d, v%d, v%d" % (8 + i % 4, FP + i, FP + i))
    A("v_add_f32 v8, v8, v9\nv_add_f32 v10, v10, v11\nv_add_f32 v8, v8, v10")
    xsum_g(A, "v8", "v9")
    A("v_mov_b32 v9, 0x3727C5AC")
    A("v_fmac_f32 v9, 0x%08x, v8" % 0x3ACCCCCD)
    A("v_rsq_f32 v8, v9\ns_nop 0")
    for i in range(160): A("v_mul_f32 v%d, v%d, v8" % (FP + i, FP + i))
    for i in range(80): A("v_cvt_pk_bf16_f32 v%d, v%d, v%d" % (RAW + i, FP + 2 * i, FP + 2 * i + 1))
    for kk in range(20):
        A("global_store_dwordx4 v6, %s, s[22:23] offset:%d" % (vr(RAW + kk * 4, 4), (kk & 1) * 2048))
        if kk & 1: A("s_add_u32 s22, s22, 4096\ns_addc_u32 s23, s23, 0")
    A("s_endpgm")
    A.label("K1_notln")
    A("s_cmp_ge_u32 s2, %d\ns_cbranch_scc1 K1_notinit" % (N_B + N_LN + N_INIT))
    if touch_rest: code_touch(A, "ALL_last", 98304, vdst=20, sb=40, start_label="K1_last")
    A("s_sub_u32 s16, s2, %d" % (N_B + N_LN))
    A("v_lshlrev_b32 v3, 4, v0")
    for r in range(4): A("v_mov_b32 v%d, -1\nv_mov_b32 v%d, 0" % (8 + r, 12 + r))
    A("s_mul_i32 s17, s16, 40960\ns_add_u32 s17, s17, 0x%x" % (MEMB + 40960))
    A("s_add_u32 s20, s4, s17\ns_addc_u32 s21, s5, 0")
    for i in range(10):
        A("global_store_dwordx4 v3, v[8:11], s[20:21]\ns_add_u32 s20, s20, 4096\ns_addc_u32 s21, s21, 0")
    A("s_lshl_b32 s17, s16, 14\ns_add_u32 s17, s17, 0x%x" % PM)
    A("s_add_u32 s20, s4, s17\ns_addc_u32 s21, s5, 0")
    for i in range(4):
        A("global_store_dwordx4 v3, v[12:15], s[20:21]\ns_add_u32 s20, s20, 4096\ns_addc_u32 s21, s21, 0")
    xr_base(A, "s18", "s4")
    A("s_lshl_b32 s17, s16, 15\ns_add_u32 s17, s17, s18")
    A("s_add_u32 s20, s4, s17\ns_addc_u32 s21, s5, 0")
    for i in range(8):
        A("global_store_dwordx4 v3, v[12:15], s[20:21]\ns_add_u32 s20, s20, 4096\ns_addc_u32 s21, s21, 0")
    A("s_endpgm")
    A.label("K1_notinit")
    A("s_cmp_eq_u32 s2, %d\ns_cbranch_scc1 K1_cal" % (N_B + N_LN + N_INIT + 1))
    A("s_cmp_lg_u32 s2, %d\ns_cbranch_scc1 K1_end" % (N_B + N_LN + N_INIT))
    A("s_add_u32 s20, s4, 0x%x\ns_addc_u32 s21, s5, 0" % MEMB)
    A("s_mov_b32 s22, 0xfffe")
    for rnd in range(3):
        A("v_add_u32 v3, %d, v0" % (256 * rnd))
        if rnd == 2:
            A("v_cmp_gt_u32 vcc, 0x280, v3\ns_and_saveexec_b64 s[24:25], vcc\ns_cbranch_execz K1_end")
        A("v_and_b32 v4, 0x3e3, v3")
        A("v_bfe_u32 v5, v3, 3, 1\nv_lshl_add_u32 v4, v5, 4, v4\nv_bfe_u32 v5, v3, 2, 1\nv_lshl_add_u32 v4, v5, 3, v4\nv_bfe_u32 v5, v3, 4, 1\nv_lshl_add_u32 v4, v5, 2, v4")
        A("v_lshlrev_b32 v4, 1, v4\nv_add_u32 v6, 5120, v4")
        for m in range(8): A("global_load_ushort v%d, %s, s[14:15] offset:%d" % (8 + m, "v4" if m < 4 else "v6", (m & 3) * 1280 if m < 4 else (m - 4) * 1280))
        A("s_waitcnt vmcnt(0)")
        for m in range(8): A("v_min_u32 v%d, s22, v%d" % (8 + m, 8 + m))
        for p in range(4): A("v_lshl_or_b32 v%d, v%d, 16, v%d" % (16 + p, 9 + 2 * p, 8 + 2 * p))
        A("v_lshlrev_b32 v5, 4, v3")
        for x in range(4):
            A("global_store_dwordx4 v5, v[16:19], s[20:21]\nv_add_u32 v5, 10240, v5")
        A("s_nop 1")
    A("s_endpgm")
    A.label("K1_cal")
    A("s_cmp_lg_u32 s3, 0\ns_cbranch_scc1 K1_end")
    A("s_mov_b64 exec, 1")
    xr_base(A, "s18", "s4")
    A("s_add_u32 s18, s18, 0x1F0000")
    A("s_mov_b32 s30, -1\ns_mov_b32 s31, -1\nv_mov_b32 v4, 0")
    for rep in range(3):
        for p in range(2):
            A("s_add_u32 s17, s18, %d\nv_mov_b32 v3, s17" % (p * 8192 + rep * 512))
            A("s_memtime s[20:21]\ns_waitcnt lgkmcnt(0)")
            A("global_store_dword v3, v4, s[4:5] sc1\ns_waitcnt vmcnt(0)")
            A("global_load_dword v5, v3, s[4:5] sc1\ns_waitcnt vmcnt(0)")
            A("s_memtime s[22:23]\ns_waitcnt lgkmcnt(0)")
            A("s_sub_u32 s22, s22, s20")
            if rep > 0: A("s_min_u32 s%d, s%d, s22" % (30 + p, 30 + p))
    A("s_cmp_lt_u32 s31, s30\ns_cselect_b32 s17, 1, 0")
    A("s_getreg_b32 s19, hwreg(HW_REG_XCC_ID)\ns_bfe_u32 s19, s19, 0x10002\ns_xor_b32 s17, s17, s19\ns_lshl_b32 s17, s17, 13")
    A("v_mov_b32 v8, s17\nv_mov_b32 v9, s30\nv_mov_b32 v10, s31\nv_mov_b32 v11, s19\nv_mov_b32 v3, 0x%x" % CALW)
    A("global_store_dwordx4 v3, v[8:11], s[4:5]")
    A.label("K1_end")
    A("s_endpgm")
    A.label("K1_last")
    return kernel_desc("prep_kernel", 256, 48)
```

```python
from fw import *
CALW = 0x12F0000
N_B, N_LN, N_INIT = 256, 32, 64
K1_GRID = N_B + N_LN + N_INIT + 2
def xsum_g(A, a, t, op="v_add_f32"):
    A("v_mov_b32 %s, %s\ns_nop 1\nv_permlane16_swap_b32 %s, %s\n%s %s, %s, %s" % (t, a, a, t, op, a, a, t))
    A("v_mov_b32 %s, %s\ns_nop 1\nv_permlane32_swap_b32 %s, %s\n%s %s, %s, %s" % (t, a, a, t, op, a, a, t))
def xr_base(A, dst, ws):
    A("s_add_u32 %s, %s, 0x%x" % (dst, ws, XR + 0x1FFFFF))
    A("s_and_b32 %s, %s, 0xFFE00000" % (dst, dst))
    A("s_sub_u32 %s, %s, %s" % (dst, dst, ws))
def ln_addr(A):
    A("v_and_b32 v3, 15, v1\nv_lshrrev_b32 v4, 4, v1\nv_mul_u32_u24 v5, 1280, v4")
    A("v_lshrrev_b32 v6, 2, v3\nv_lshl_add_u32 v5, v6, 6, v5\nv_and_b32 v7, 3, v3\nv_lshl_add_u32 v5, v7, 3, v5")
    A("v_lshlrev_b32 v6, 11, v6\nv_lshl_add_u32 v6, v7, 8, v6\nv_lshl_add_u32 v6, v4, 4, v6")
def ln_load(A, usg, RAW):
    A("s_mul_i32 s17, %s, 5120\ns_add_u32 s20, s12, s17\ns_addc_u32 s21, s13, 0" % usg)
    for n in range(5):
        for hf in range(2): A("global_load_dwordx2 %s, v5, s[20:21] offset:%d" % (vr(RAW + n * 4 + hf * 2, 2), n * 256 + hf * 32))
def ln_compute(A, usg, RAW, fl=""):
    FP = 16
    A("s_lshr_b32 s17, %s, 3\ns_mul_i32 s17, s17, 40960\ns_bfe_u32 s18, %s, 0x10002\ns_lshl_b32 s18, s18, 10\ns_add_u32 s17, s17, s18" % (usg, usg))
    A("s_and_b32 s18, %s, 3\ns_lshl_b32 s18, s18, 6\ns_add_u32 s17, s17, s18\ns_add_u32 s22, s4, s17\ns_addc_u32 s23, s5, 0" % usg)
    for i in range(20): A("v_lshlrev_b32 v%d, 16, v%d\nv_and_b32 v%d, 0xffff0000, v%d" % (FP + 2 * i, RAW + i, FP + 2 * i + 1, RAW + i))
    def rowsum():
        A("v_add_f32 v8, v8, v9\nv_add_f32 v10, v10, v11\nv_add_f32 v8, v8, v10")
        for sh in (8, 4, 2, 1): A("s_nop 1\nv_add_f32_dpp v8, v8, v8 row_ror:%d row_mask:0xf bank_mask:0xf" % sh)
    for a in range(4): A("v_add_f32 v%d, v%d, v%d" % (8 + a, FP + a, FP + 4 + a))
    for i in range(8, 40): A("v_add_f32 v%d, v%d, v%d" % (8 + i % 4, 8 + i % 4, FP + i))
    rowsum()
    A("v_mul_f32 v12, 0x%08x, v8" % 0x3ACCCCCD)
    for i in range(40): A("v_sub_f32 v%d, v%d, v12" % (FP + i, FP + i))
    for a in range(4): A("v_mul_f32 v%d, v%d, v%d" % (8 + a, FP + a, FP + a))
    for i in range(4, 40): A("v_fmac_f32 v%d, v%d, v%d" % (8 + i % 4, FP + i, FP + i))
    rowsum()
    A("v_mov_b32 v9, 0x3727C5AC\nv_fmac_f32 v9, 0x%08x, v8\nv_rsq_f32 v8, v9\ns_nop 0" % 0x3ACCCCCD)
    for i in range(40): A("v_mul_f32 v%d, v%d, v8" % (FP + i, FP + i))
    for i in range(20): A("v_cvt_pk_bf16_f32 v%d, v%d, v%d" % (RAW + i, FP + 2 * i, FP + 2 * i + 1))
    for n in range(5):
        A("global_store_dwordx4 v6, %s, s[22:23]%s" % (vr(RAW + n * 4, 4), fl))
        if n < 4: A("s_add_u32 s22, s22, 8192\ns_addc_u32 s23, s23, 0")
def ln_wave(A, usg, fl=""):
    ln_addr(A); ln_load(A, usg, 64); A("s_waitcnt vmcnt(0)"); ln_compute(A, usg, 64, fl)
N_LN2 = 128
K1B_GRID = N_LN2 + N_INIT + 2
def gen_k1b(A):
    kernel_head(A, "prep_kernel")
    A("s_load_dwordx2 s[4:5], s[0:1], %d" % K_WS)
    A("s_load_dwordx4 s[12:15], s[0:1], %d" % K_X)
    A("v_and_b32 v1, 63, v0\nv_lshrrev_b32 v2, 6, v0\ns_nop 0\nv_readfirstlane_b32 s3, v2")
    A("s_waitcnt lgkmcnt(0)")
    A("s_cmp_eq_u32 s2, 0\ns_cbranch_scc1 K1_cal\ns_cmp_eq_u32 s2, 1\ns_cbranch_scc1 K1_m0\ns_sub_u32 s2, s2, 2")
    A("s_cmp_ge_u32 s2, %d\ns_cbranch_scc1 K1_notln" % N_LN2)
    A("s_lshl_b32 s16, s2, 2\ns_add_u32 s16, s16, s3")
    ln_wave(A, "s16")
    A("s_endpgm")
    A.label("K1_notln")
    A("s_cmp_ge_u32 s2, %d\ns_cbranch_scc1 K1_end" % (N_LN2 + N_INIT))
    code_touch(A, "ALL_last", 98304, vdst=20, sb=40, start_label="K1_last")
    A("s_sub_u32 s16, s2, %d" % N_LN2)
    A("v_lshlrev_b32 v3, 4, v0")
    for r in range(4): A("v_mov_b32 v%d, -1\nv_mov_b32 v%d, 0" % (8 + r, 12 + r))
    A("s_mul_i32 s17, s16, 40960\ns_add_u32 s17, s17, 0x%x" % (MEMB + 40960))
    A("s_add_u32 s20, s4, s17\ns_addc_u32 s21, s5, 0")
    for i in range(10):
        A("global_store_dwordx4 v3, v[8:11], s[20:21]\ns_add_u32 s20, s20, 4096\ns_addc_u32 s21, s21, 0")
    A("s_lshl_b32 s17, s16, 14\ns_add_u32 s17, s17, 0x%x" % PM)
    A("s_add_u32 s20, s4, s17\ns_addc_u32 s21, s5, 0")
    for i in range(4):
        A("global_store_dwordx4 v3, v[12:15], s[20:21]\ns_add_u32 s20, s20, 4096\ns_addc_u32 s21, s21, 0")
    A("s_mul_i32 s17, s16, 10240\ns_add_u32 s17, s17, 0x%x\ns_add_u32 s20, s4, s17\ns_addc_u32 s21, s5, 0" % YB)
    A("global_store_dwordx4 v3, v[8:11], s[20:21]\nglobal_store_dwordx4 v3, v[8:11], s[20:21] offset:2048\ns_add_u32 s20, s20, 6144\ns_addc_u32 s21, s21, 0")
    A("global_store_dwordx4 v3, v[8:11], s[20:21]\nglobal_store_dwordx4 v3, v[8:11], s[20:21] offset:-2048")
    xr_base(A, "s18", "s4")
    A("s_lshl_b32 s17, s16, 15\ns_add_u32 s17, s17, s18")
    A("s_add_u32 s20, s4, s17\ns_addc_u32 s21, s5, 0")
    for i in range(8):
        A("global_store_dwordx4 v3, v[12:15], s[20:21]\ns_add_u32 s20, s20, 4096\ns_addc_u32 s21, s21, 0")
    A("s_endpgm")
    A.label("K1_m0")
    A("s_add_u32 s20, s4, 0x%x\ns_addc_u32 s21, s5, 0\ns_mov_b32 s22, 0xfffefffe" % MEMB)
    for rnd in range(10):
        A("v_add_u32 v3, %d, v0" % (256 * rnd))
        A("v_lshrrev_b32 v4, 6, v3\nv_lshlrev_b32 v5, 4, v4\nv_and_b32 v6, 8, v3\nv_add_u32 v5, v5, v6")
        A("v_lshrrev_b32 v6, 2, v3\nv_xor_b32 v6, v6, v4\nv_and_b32 v6, 1, v6\nv_lshl_add_u32 v5, v6, 2, v5")
        A("v_bfe_u32 v6, v3, 1, 1\nv_add_u32 v5, v5, v6\nv_and_b32 v6, 1, v3\nv_lshl_add_u32 v5, v6, 1, v5")
        A("v_bfe_u32 v6, v3, 4, 2\nv_mul_u32_u24 v6, 2560, v6\nv_lshl_add_u32 v5, v5, 1, v6")
        A("global_load_ushort v%d, v5, s[14:15]\nglobal_load_ushort v%d, v5, s[14:15] offset:1280" % (16 + 2 * rnd, 17 + 2 * rnd))
    A("s_waitcnt vmcnt(0)\nv_lshlrev_b32 v5, 2, v0")
    for rnd in range(10):
        A("v_lshl_or_b32 v%d, v%d, 16, v%d\nv_pk_min_u16 v%d, s22, v%d" % (16 + 2 * rnd, 17 + 2 * rnd, 16 + 2 * rnd, 16 + 2 * rnd, 16 + 2 * rnd))
    for x in range(4):
        for rnd in range(10):
            A("global_store_dword v5, v%d, s[20:21] offset:%d" % (16 + 2 * rnd, (rnd % 4) * 1024))
            if rnd % 4 == 3: A("s_add_u32 s20, s20, 4096\ns_addc_u32 s21, s21, 0")
        A("s_add_u32 s20, s20, 2048\ns_addc_u32 s21, s21, 0")
    A("s_endpgm")
    A.label("K1_cal")
    A("s_cmp_lg_u32 s3, 0\ns_cbranch_scc1 K1_end")
    A("s_mov_b64 exec, 1")
    xr_base(A, "s18", "s4")
    A("s_add_u32 s18, s18, 0x1F0000")
    A("s_mov_b32 s30, -1\ns_mov_b32 s31, -1\nv_mov_b32 v4, 0")
    for rep in range(3):
        for p in range(2):
            A("s_add_u32 s17, s18, %d\nv_mov_b32 v3, s17" % (p * 8192 + rep * 512))
            A("s_memtime s[20:21]\ns_waitcnt lgkmcnt(0)")
            A("global_store_dword v3, v4, s[4:5] sc1\ns_waitcnt vmcnt(0)")
            A("global_load_dword v5, v3, s[4:5] sc1\ns_waitcnt vmcnt(0)")
            A("s_memtime s[22:23]\ns_waitcnt lgkmcnt(0)")
            A("s_sub_u32 s22, s22, s20")
            if rep > 0: A("s_min_u32 s%d, s%d, s22" % (30 + p, 30 + p))
    A("s_cmp_lt_u32 s31, s30\ns_cselect_b32 s17, 1, 0")
    A("s_getreg_b32 s19, hwreg(HW_REG_XCC_ID)\ns_bfe_u32 s19, s19, 0x10002\ns_xor_b32 s17, s17, s19\ns_lshl_b32 s17, s17, 13")
    A("v_mov_b32 v8, s17\nv_mov_b32 v9, s30\nv_mov_b32 v10, s31\nv_mov_b32 v11, s19\nv_mov_b32 v3, 0x%x" % CALW)
    A("global_store_dwordx4 v3, v[8:11], s[4:5]")
    A.label("K1_end")
    A("s_endpgm")
    A.label("K1_last")
    return kernel_desc("prep_kernel", 256, 48)
```

```python
from fw import *
from bulk import *
from k1 import xsum_g, xr_base, CALW
import struct
SCALE_L2E = struct.unpack("<I", struct.pack("<f", 192 ** -0.5 * 1.4426950408889634))[0]
SPIN = 1 << 21
TUNE = dict(sl_pub=8, sl_x=2, sl_q=14, pmode=0, pthr=1, xthr=2, qthr=3, sl_p=0, pf=1, sl_pf=2, nprobe=1)
STAMPS = False
STSET = 0
STV = 24
def stamp(A, i, st=0):
    if STAMPS and st == STSET: A("s_memrealtime s[%d:%d]" % (12 + 2 * i, 13 + 2 * i))
def stamp_out(A, t0):
    if not STAMPS: return
    A("s_waitcnt lgkmcnt(0)\ns_lshl_b32 s93, s2, 2\ns_add_u32 s93, s93, s3\ns_lshl_b32 s93, s93, 6\ns_add_u32 s93, s93, s44\ns_lshl_b32 s93, s93, 5\ns_add_u32 s93, s93, 0x%x" % STB)
    A("v_mov_b32 v%d, s12\nv_mov_b32 v%d, s14\nv_mov_b32 v%d, s16\nv_mov_b32 v%d, s18\nv_mov_b32 v%d, s93\ns_mov_b64 exec, 1" % (t0, t0 + 1, t0 + 2, t0 + 3, STV))
    A("global_store_dwordx4 v%d, v[%d:%d], s[4:5]\ns_nop 1\nv_mov_b32 v%d, s20\nv_mov_b32 v%d, s22" % (STV, t0, t0 + 3, t0, t0 + 1))
    A("global_store_dwordx2 v%d, v[%d:%d], s[4:5] offset:16\ns_mov_b64 exec, -1" % (STV, t0, t0 + 1))
class OOL:
    def __init__(self): self.b = []
def local_store(A, ool, lines):
    Ls = A.newlabel("SLOW"); Lc = A.newlabel("CONT")
    A("s_cmp_eq_u32 s43, 0\ns_cbranch_scc1 %s" % Ls)
    for l in lines: A(l)
    A.label(Lc)
    ool.b.append("%s:\n" % Ls + "\n".join(l + (" sc1" if l.startswith("global_store") else "") for l in lines) + "\ns_branch %s" % Lc)
def spin_guard(A, Lpoll):
    A("s_add_u32 s66, s66, 1\ns_cmp_lt_u32 s66, %d\ns_cbranch_scc1 %s\ns_branch K2_abort" % (SPIN, Lpoll))
def handshake_send(A):
    L = A.newlabel("HS")
    A("s_load_dwordx2 s[6:7], s[0:1], %d" % K_DBG)
    A("s_getreg_b32 s48, hwreg(HW_REG_XCC_ID)\ns_and_b32 s48, s48, 7")
    A("s_mul_i32 s49, s48, s48\ns_lshl_b32 s49, s49, 16\ns_lshl_b32 s48, s48, 8\ns_add_u32 s48, s48, s49\ns_add_u32 s48, s48, 1")
    A("s_lshl_b32 s49, s40, 2\nv_mov_b32 v20, s49\nv_mov_b32 v21, s48\ns_waitcnt lgkmcnt(0)")
    A("s_cmp_lg_u32 s3, 0\ns_cbranch_scc1 %s\ns_mov_b64 exec, 1\nglobal_atomic_add v20, v21, s[6:7] sc1\ns_mov_b64 exec, -1" % L)
    A.label(L)
def handshake_recv(A):
    L = A.newlabel("HR"); L2 = A.newlabel("HD")
    A("s_lshl_b32 s49, s40, 2\nv_mov_b32 v20, s49")
    A.label(L)
    A("global_load_dword v21, v20, s[6:7] sc1\ns_waitcnt vmcnt(0)\nv_readfirstlane_b32 s48, v21")
    A("s_and_b32 s49, s48, 0xff\ns_cmp_eq_u32 s49, 28\ns_cbranch_scc1 %s\ns_sleep 4" % L2)
    spin_guard(A, L)
    A.label(L2)
    A("s_bfe_u32 s49, s48, 0x80008\ns_mul_i32 s49, s49, s49\ns_lshr_b32 s48, s48, 16\ns_mul_i32 s48, s48, 28")
    A("s_cmp_eq_u32 s48, s49\ns_cselect_b32 s43, 1, 0")
def mem_setup(A, MEMA, vsrc, vtr, vp0, vp1, vp2):
    A("v_mov_b32 v3, 0x4444\nv_mov_b32 v20, 0xeeee\nv_and_b32 v21, 8, v1\nv_cmp_ne_u32 vcc, 0, v21\ns_nop 1\nv_cndmask_b32 v3, v3, v20, vcc")
    A("s_mul_i32 s67, s3, 3072\ns_cmp_eq_u32 s3, 3\ns_cselect_b32 s67, 8192, s67")
    A("v_lshlrev_b32 v%d, 4, v1\nv_add_u32 v%d, s67, v%d" % (vsrc, vsrc, vsrc))
    A("v_bfe_u32 v20, v1, 5, 1\nv_lshlrev_b32 v%d, 9, v20" % vtr)
    for bit, sh in ((3, 7), (4, 6), (1, 5), (2, 4), (0, 3)):
        A("v_bfe_u32 v20, v1, %d, 1\nv_lshl_add_u32 v%d, v20, %d, v%d" % (bit, vtr, sh, vtr))
    A("v_add_u32 v%d, %d, v%d" % (vtr, MEMA, vtr))
    A("v_and_b32 v20, 7, v1\nv_lshlrev_b32 v20, 4, v20\nv_lshl_add_u32 v%d, v1, 7, v20\nv_add_u32 v%d, %d, v%d" % (vp0, vp0, MEMA, vp0))
    A("v_and_b32 v21, 31, v1\nv_and_b32 v20, 3, v1\nv_lshlrev_b32 v20, 4, v20\nv_lshl_add_u32 v%d, v21, 6, v20\nv_add_u32 v%d, %d, v%d" % (vp1, vp1, MEMA + 8192, vp1))
    A("v_xor_b32 v%d, 64, v%d" % (vp2, vp0))
def mem_poll(A, tag, vsrc, vp0, vp1, vp2, t0, thr=3, probe_first=False):
    L = tag + "_poll"; L3 = tag + "_n3"; Lg = tag + "_go"
    def probe_rd(): A("ds_read_b128 %s, v%d\nds_read_b128 %s, v%d\nds_read_b128 %s, v%d" % (vr(t0, 4), vp0, vr(t0 + 4, 4), vp2, vr(t0 + 8, 4), vp1))
    def probe_ck():
        A("s_waitcnt lgkmcnt(1)")
        for r in range(4): A("v_pk_max_u16 v%d, v%d, v%d" % (t0 + r, t0 + r, t0 + 4 + r))
        A("s_waitcnt lgkmcnt(0)")
        for r in range(4): A("v_pk_max_u16 v%d, v%d, v%d" % (t0 + r, t0 + r, t0 + 8 + r))
        A("v_pk_max_u16 v%d, v%d, v%d\nv_pk_max_u16 v%d, v%d, v%d\nv_pk_max_u16 v%d, v%d, v%d" % (t0, t0, t0 + 1, t0 + 2, t0 + 2, t0 + 3, t0, t0, t0 + 2))
        A("v_lshlrev_b32 v%d, 16, v%d\nv_max_u32 v%d, v%d, v%d" % (t0 + 1, t0, t0, t0, t0 + 1))
        A("v_cmp_le_u32 vcc, s95, v%d\ns_cbranch_vccz %s" % (t0, Lg))
    if probe_first: probe_rd(); probe_ck()
    A.label(L)
    A("global_load_lds_dwordx4 v%d, s[60:61] sc1\nglobal_load_lds_dwordx4 v%d, s[60:61] offset:1024 sc1" % (vsrc, vsrc))
    A("s_cmp_ge_u32 s3, 2\ns_cbranch_scc1 %s\nglobal_load_lds_dwordx4 v%d, s[60:61] offset:2048 sc1" % (L3, vsrc))
    A.label(L3)
    for rep in range(TUNE["nprobe"]):
        probe_rd(); probe_ck()
    A("s_waitcnt vmcnt(%d)" % thr)
    spin_guard(A, L)
    A.label(Lg)
def a_reads(A, AREG, vtr):
    for q in range(10):
        A.lds("ds_read_b64_tr_b16 %s, v%d offset:%d" % (vr(AREG + 4 * q, 2), vtr, q * 1024), ("A", q, 0))
        A.lds("ds_read_b64_tr_b16 %s, v%d offset:%d" % (vr(AREG + 4 * q + 2, 2), vtr, q * 1024 + 256), ("A", q, 1))
def chk_ops(AREG, c0, c1):
    o = []
    for n in range(40):
        c = c0 if n % 2 == 0 else c1
        o.append("v_pk_max_u16 v%d, v%d, v%d" % (c, (AREG + n) if n < 2 else c, AREG + n))
    return o
def chk_final(A, c0, c1, Lretry):
    A("v_pk_max_u16 v%d, v%d, v%d\nv_lshrrev_b32 v%d, 16, v%d\nv_and_b32 v%d, 0xffff, v%d\nv_max_u32 v%d, v%d, v%d" % (c0, c0, c1, c1, c0, c0, c0, c0, c0, c1))
    A("v_cmp_eq_u32 vcc, 0xffff, v%d\ns_cbranch_vccnz %s" % (c0, Lretry))
def nan_check(A, ool, tag, acc, AREG, c0, c1, Lretry):
    Lb = tag + "_nan"; Lc = tag + "_nanc"
    A("v_cmp_u_f32 vcc, v%d, v%d\nv_cmp_u_f32 s[48:49], v%d, v%d\ns_or_b64 vcc, vcc, s[48:49]\ns_cbranch_vccnz %s" % (acc, acc + 1, acc + 2, acc + 3, Lb))
    A.label(Lc)
    B = Asm(); B.label(Lb)
    if STAMPS: B("v_mov_b32 v%d, 68\nv_mov_b32 v%d, 1\ns_mov_b64 exec, 1\nglobal_atomic_add v%d, v%d, s[6:7] offset:%d\ns_mov_b64 exec, -1" % (c0, c1, c0, c1, 0 if tag == "QK" else 4))
    for l in chk_ops(AREG, c0, c1): B(l)
    chk_final(B, c0, c1, Lb + "r")
    B("s_branch %s" % Lc)
    B.label(Lb + "r")
    spin_guard(B, Lretry)
    ool.b.append("\n".join(B.l))
def pair_sum_ops(a, b, dst):
    o = ["v_permlane32_swap_b32 v%d, v%d" % (a + r, b + r) for r in range(4)]
    o += ["v_add_f32 v%d, v%d, v%d" % (a + r, a + r, b + r) for r in range(4)]
    o += ["v_cvt_pk_bf16_f32 v%d, v%d, v%d" % (dst, a, a + 1), "v_cvt_pk_bf16_f32 v%d, v%d, v%d" % (dst + 1, a + 2, a + 3)]
    return o
def pair_sum(A, a, b, dst):
    for r in range(4): A("v_permlane32_swap_b32 v%d, v%d" % (a + r, b + r))
    for r in range(4): A("v_add_f32 v%d, v%d, v%d" % (a + r, a + r, b + r))
    A("v_cvt_pk_bf16_f32 v%d, v%d, v%d\nv_cvt_pk_bf16_f32 v%d, v%d, v%d" % (dst, a, a + 1, dst + 1, a + 2, a + 3))

Q_KTB, Q_QTB, Q_MEMA, Q_XB = 98304, 122880, 135168, 155648
def role_qk(A, ool, use_flags=True, nsteps=64):
    A.c("==== role QK : s40=x s41=idx")
    A("s_load_dwordx4 s[8:11], s[0:1], %d" % K_WQ)
    handshake_send(A)
    A("s_lshl_b32 s42, s40, 3\ns_add_u32 s42, s42, s41")
    dma_src_regs(A, 384, 12288, 24, t0=20)
    A("s_mov_b32 s91, 384\ns_mul_i32 s56, s3, 3")
    for i in range(3):
        tr_addr_reg(A, 384, "s56", 8 + i, t0=20); A("s_add_u32 s56, s56, 1")
    A("s_mul_i32 s48, s42, 384\ns_add_u32 s8, s8, s48\ns_addc_u32 s9, s9, 0\ns_add_u32 s10, s10, s48\ns_addc_u32 s11, s11, 0")
    blk = {}
    n = 0
    for p in range(3):
        for q in range(10): blk[(3 + p, q)] = 128 + 8 * n; n += 1
        for q in range(6): blk[(p, q)] = 128 + 8 * n; n += 1
    phys = {0: 7 * 12288}
    for r in range(7): phys[6 + r] = r * 12288
    for k in range(1, 6): phys[k] = 98304 + (k - 1) * 12288
    ch = []
    for kk in range(20): ch.append((10, 32 * 12288, [(t, blk[(3 + t, kk >> 1)] + 4 * (kk & 1)) for t in range(3)]))
    for kk in range(12): ch.append((8, 32 * 12288, [(t, blk[(t, kk >> 1)] + 4 * (kk & 1)) for t in range(3)]))
    for kk in range(12, 20): ch.append((8, 32 * 12288, None))
    A.vm_q = []; A.lds_q = []
    load_weights(A, 384, ch, [phys[i % 13] for i in range(40)], 24, 8, 28)
    for i in range(3): A("v_add_u32 v%d, 49152, v%d" % (11 + i, 8 + i))
    mem_setup(A, Q_MEMA, 4, 5, 6, 7, 127)
    A("s_mul_i32 s48, s3, %d\ns_add_u32 s48, s48, %d" % (48 * 32, Q_XB))
    A("v_and_b32 v20, 15, v1\nv_lshlrev_b32 v14, 5, v20\nv_lshrrev_b32 v21, 4, v1\nv_lshl_add_u32 v14, v21, 3, v14\nv_add_u32 v14, s48, v14")
    A("v_lshlrev_b32 v15, 3, v1\nv_add_u32 v15, %d, v15" % Q_XB)
    A("v_lshlrev_b32 v16, 4, v1\nv_add_u32 v16, %d, v16" % Q_KTB)
    A("s_and_b32 s48, s3, 1\ns_mul_i32 s48, s48, 6144\ns_add_u32 s48, s48, %d\nv_lshlrev_b32 v17, 4, v1\nv_add_u32 v17, s48, v17" % Q_QTB)
    A("s_lshr_b32 s54, s41, 2\ns_lshl_b32 s48, s40, 1\ns_add_u32 s54, s54, s48\ns_and_b32 s55, s41, 1\ns_bfe_u32 s56, s41, 0x10001")
    Lt = A.newlabel("QKA"); Lj = A.newlabel("QKB")
    A("s_cmp_lg_u32 s3, 0\ns_cbranch_scc1 %s" % Lt)
    A("s_mul_i32 s48, s54, 3072\ns_lshl_b32 s49, s56, 10\ns_add_u32 s49, s49, s48\ns_lshl_b32 s50, s55, 9\ns_add_u32 s49, s49, s50\ns_add_u32 s49, s49, 0x%x" % PM)
    A("v_lshlrev_b32 v18, 4, v20\nv_bfe_u32 v22, v1, 5, 1\nv_lshl_add_u32 v18, v22, 8, v18\nv_bfe_u32 v22, v1, 4, 1\nv_lshl_add_u32 v18, v22, 3, v18\nv_add_u32 v18, s49, v18")
    A("s_lshl_b32 s49, s56, 3\ns_add_u32 s49, s49, s48\ns_add_u32 s49, s49, s50\ns_add_u32 s49, s49, 0x%x" % (PM + 2048))
    A("v_lshlrev_b32 v19, 4, v20\nv_lshl_add_u32 v19, v22, 8, v19\nv_add_u32 v19, s49, v19")
    A("s_branch %s" % Lj)
    A.label(Lt)
    A("s_mul_i32 s48, s54, 10240\ns_and_b32 s49, s3, 1\ns_mul_i32 s49, s49, 5120\ns_add_u32 s48, s48, s49\ns_add_u32 s48, s48, 0x%x" % PT)
    A("s_and_b32 s49, s41, 3\ns_lshl_b32 s49, s49, 10\ns_add_u32 s49, s49, s48\nv_lshlrev_b32 v18, 4, v1\nv_add_u32 v18, s49, v18")
    A("s_lshl_b32 s49, s56, 3\ns_lshl_b32 s50, s55, 9\ns_add_u32 s49, s49, s50\ns_add_u32 s49, s49, s48\ns_add_u32 s49, s49, 4096")
    A("v_bfe_u32 v22, v1, 4, 1\nv_lshlrev_b32 v19, 4, v20\nv_lshl_add_u32 v19, v22, 8, v19\nv_add_u32 v19, s49, v19")
    A("v_lshlrev_b32 v21, 2, v21")
    for r in range(4):
        A("v_add_u32 v22, %d, v21\nv_cmp_le_u32 s[%d:%d], v22, v20" % (r, 24 + 2 * r, 25 + 2 * r))
    A("s_nop 1\ns_cmp_eq_u32 s3, 3")
    for r in range(4):
        A("s_cselect_b64 s[%d:%d], s[%d:%d], 0\ns_cselect_b64 s[%d:%d], -1, s[%d:%d]" % (32 + 2 * r, 33 + 2 * r, 24 + 2 * r, 25 + 2 * r, 24 + 2 * r, 25 + 2 * r, 24 + 2 * r, 25 + 2 * r))
    A.label(Lj)
    A("s_mov_b32 s70, 0x%08x\ns_mov_b32 s71, s70\ns_mov_b32 s72, 0\ns_mov_b32 s73, -1\nv_mov_b32 v120, 0xff800000\nv_mov_b32 v121, 0x7fff7fff" % SCALE_L2E)
    A("s_mov_b32 s74, 0x00ff00ff\ns_mov_b32 s75, 0x00ff00ff\ns_mov_b32 s76, 0\ns_mov_b32 s77, 0x00ff00ff")
    A("s_mov_b64 s[84:85], %s" % ("0" if use_flags else "-1"))
    A("s_lshl_b32 s48, s42, 8\ns_add_u32 s48, s48, 0x%x\nv_lshlrev_b32 v122, 2, v1\nv_add_u32 v122, s48, v122\nv_add_u32 v123, 0x2000, v122" % FL_K)
    A("v_lshlrev_b32 v124, 4, v0")
    for r in range(4): A("v_mov_b32 v%d, -1" % (116 + r))
    A("v_add_u32 v20, %d, v124" % Q_MEMA)
    for i in range(5): A("ds_write_b128 v20, v[116:119] offset:%d" % (i * 4096))
    handshake_recv(A)
    A("s_mov_b32 s44, 0\ns_mov_b32 s68, 0x80008000\ns_mov_b32 s69, 0x80008000\ns_mov_b32 s45, 0")
    A("s_mul_i32 s48, s40, 10240\ns_add_u32 s48, s48, 0x%x\ns_add_u32 s60, s4, s48\ns_addc_u32 s61, s5, 0" % MEMB)
    A("s_mov_b64 s[62:63], s[4:5]")
    def kq_wait(ssg):
        L = A.newlabel("KQ"); L2 = A.newlabel("KQ")
        pass
        A.label(L)
        A("s_bitcmp1_b64 s[84:85], %s\ns_cbranch_scc1 %s" % (ssg, L2))
        A("global_load_dword v20, v122, s[4:5] sc1\nglobal_load_dword v21, v123, s[4:5] sc1\ns_waitcnt vmcnt(0)")
        A("v_and_b32 v20, v20, v21\nv_cmp_eq_u32 s[84:85], 1, v20\ns_sleep 2")
        spin_guard(A, L)
        A.label(L2)
    def kq_base(ssg, base, dst):
        A("s_lshl_b32 s48, %s, 5\ns_add_u32 s48, s48, s42\ns_mul_i32 s48, s48, 12288\ns_add_u32 s48, s48, 0x%x" % (ssg, base))
        A("s_add_u32 s%d, s4, s48\ns_addc_u32 s%d, s5, 0" % (dst, dst + 1))
    def kq_ops(sb, ldssg):
        o = ["s_add_u32 m0, s86, %s" % ldssg]
        for i in range(3): o += ["global_load_lds_dwordx4 v124, s[%d:%d] offset:%d sc1" % (sb, sb + 1, i * 1024), None, None]
        return o
    AREG, ACC, STG = 24, 64, 88
    def stage(p, qq, only=None):
        A_ = 8 + p if qq < 2 else 11 + p
        for hf in (range(2) if only is None else [only]):
            for tau in range(2):
                A.lds("ds_read_b64_tr_b16 %s, v%d offset:%d" % (vr(STG + qq * 8 + hf * 4 + tau * 2, 2), A_, ((2 * qq + hf) % 4) * 12288 + tau * 6144), ("S", p, qq))
    def stage1(p, qq, hf, tau):
        A_ = 8 + p if qq < 2 else 11 + p
        A.lds("ds_read_b64_tr_b16 %s, v%d offset:%d" % (vr(STG + qq * 8 + hf * 4 + tau * 2, 2), A_, ((2 * qq + hf) % 4) * 12288 + tau * 6144), ("S", p, qq))
    A("s_mul_i32 s86, s3, 3072\nv_lshlrev_b32 v124, 4, v1\nv_add_u32 v124, s86, v124")
    A("s_waitcnt vmcnt(0) lgkmcnt(0)\ns_barrier")
    A("s_mov_b32 s47, 1\ns_mov_b32 s87, %d\ns_mov_b32 s88, %d\ns_mov_b32 s89, %d" % (Q_KTB, Q_KTB + 12288, Q_QTB))
    kq_wait("s44"); kq_wait("s47")
    kq_base("s44", KT, 50)
    for l in kq_ops(50, "s87"): A((l or "s_nop 0") + ("\ns_nop 0" if l and "m0" in l else ""))
    kq_base("s47", KT, 96); kq_base("s44", QT, 98)
    A("s_waitcnt vmcnt(0)\ns_barrier")
    KOP = [24, 28, 32, 36, 40, 64, 68, 72, 76, 88, 92, 96]
    XO = [44, 48, 52, 56, 60, 100]
    S0, S1, S2 = 104, 108, 112
    QO = 80
    def kt_read(n):
        A.lds("ds_read_b128 %s, v16 offset:%d" % (vr(KOP[n], 4), (n & 1) * 6144 + (n >> 1) * 1024), ("K", n))
    A.label("QK_step")
    A.lds_q = []
    for r in range(24): A("v_mov_b32 v%d, 0" % (ACC + r))
    for qq in range(4): stage(0, qq)
    A("s_add_u32 s48, s45, s67\ns_add_u32 m0, s48, %d\ns_nop 0" % Q_MEMA)
    stamp(A, 0)
    mem_poll(A, "QK", 4, 6, 7, 127, 24, thr=TUNE["qthr"])
    stamp(A, 1); stamp(A, 0, 1)
    A.lds_q = []
    def a_rd(q, h): A.lds("ds_read_b64_tr_b16 %s, v5 offset:%d" % (vr(AREG + 4 * q + 2 * h, 2), q * 1024 + 256 * h), ("A", q, h))
    AH = 3
    for q in range(AH): a_rd(q, 0); a_rd(q, 1)
    F = Filler()
    F.add([None, None] + kq_ops(98, "s89") + kq_ops(96, "s88"))
    for p in range(3):
        for q in range(10):
            if p == 0: A.need_lds(("A", q, 1))
            for which in range(2):
                if which == 0: acc = ACC + 8 * p + 4; w = ur(blk[(3 + p, q)], 8)
                else:
                    acc = ACC + 8 * p
                    if q >= 6: A.need_lds(("S", p, q - 6)); w = vr(STG + (q - 6) * 8, 8)
                    else: w = ur(blk[(p, q)], 8)
                A("v_smfmac_f32_16x16x64_bf16 %s, %s, %s, v3" % (vr(acc, 4), vr(AREG + 4 * q, 4), w))
                if p == 0 and q + AH < 10: a_rd(q + AH, which)
                if p >= 1 and q < 8: stage1(p, q >> 1, q & 1, which)
                F.gap(A, 1)
            if p == 0 and q == 0: stamp(A, 1, 1)
            if q == 9: stamp(A, 2 + p, 1)
            if p == 1 and q == 2: nan_check(A, ool, "QK", ACC + 4, AREG, 125, 126, "QK_step")
            if p >= 1 and q == 2:
                F.add(pair_sum_ops(ACC + 8 * (p - 1), ACC + 8 * (p - 1) + 4, 20 + 2 * (p - 1)))
                F.add(["ds_write_b64 v14, v[%d:%d] offset:%d" % (20 + 2 * (p - 1), 21 + 2 * (p - 1), (p - 1) * 512)])
            if p == 2 and q >= 5:
                keep = list(A.lds_q)
                Lk = A.newlabel("KP")
                A("s_cbranch_scc1 %s" % Lk)
                for n in {5: (0, 1, 2), 6: (3, 4), 7: (5, 6, 9), 8: (10, 11), 9: (7, 8)}[q]: kt_read(n)
                A.label(Lk)
                A.lds_q = keep
            if p == 2 and q == 4: A("s_cmp_lg_u32 s3, 0")
    F.flush(A)
    A("s_nop 5")
    for l in pair_sum_ops(ACC + 16, ACC + 20, 22): A(l)
    A("ds_write_b64 v14, v[22:23] offset:1024")
    stamp(A, 2); stamp(A, 5, 1)
    A("s_waitcnt vmcnt(0) lgkmcnt(0)\ns_barrier")
    stamp(A, 3); stamp(A, 0, 2)
    A("s_cmp_eq_u32 s3, 1\ns_cbranch_scc1 QK_w1")
    A("s_cmp_lg_u32 s3, 0\ns_cbranch_scc1 QK_wT")
    def s_phase(tok):
        A.lds_q = []
        def rd(k):
            A.lds("ds_read_b64_tr_b16 %s, v15 offset:%d" % (vr(XO[k], 2), k * 1024), ("X", k, 0))
            A.lds("ds_read_b64_tr_b16 %s, v15 offset:%d" % (vr(XO[k] + 2, 2), k * 1024 + 512), ("X", k, 1))
        def rq(k): A.lds("ds_read_b128 %s, v17 offset:%d" % (vr(QO + 4 * (k % 2), 4), k * 1024), ("Q", k))
        if tok:
            A("s_sleep 2")
            rq(0); rd(0); kt_read(0); kt_read(1); rq(1)
            for k in range(1, 6): rd(k); kt_read(2 * k); kt_read(2 * k + 1)
        else:
            for k in range(6): rd(k)
        for k in range(6):
            b = vr(QO + 4 * (k % 2), 4) if tok else vr(XO[k], 4)
            if tok: A.need_lds(("Q", k)); A.need_lds(("K", 2 * k + 1))
            A.need_lds(("X", k, 1))
            if k == 0: stamp(A, 1, 2)
            for S, a in ((S1, KOP[2 * k]), (S2, KOP[2 * k + 1]), (S0, XO[k])):
                A("v_mfma_f32_16x16x32_bf16 %s, %s, %s, %s" % (vr(S, 4), vr(a, 4), b, "0" if k == 0 else vr(S, 4)))
            if tok and k + 2 < 6: rq(k + 2)
        stamp(A, 2, 2)
        if tok:
            A("s_nop 5")
            for r in range(4): A("v_cndmask_b32 v%d, v120, v%d, s[%d:%d]" % (S1 + r, S1 + r, 24 + 2 * r, 25 + 2 * r))
            for r in range(4): A("v_cndmask_b32 v%d, v120, v%d, s[%d:%d]" % (S2 + r, S2 + r, 32 + 2 * r, 33 + 2 * r))
        else: A("s_nop 5")
        A("v_max3_f32 v20, v108, v109, v110\nv_max3_f32 v21, v111, v112, v113")
        for r in range(4): A("v_cndmask_b32 v%d, v120, v%d, s[72:73]" % (S0 + r, S0 + r))
        A("v_max3_f32 v20, v20, v114, v115\nv_max3_f32 v21, v21, v104, v105\nv_max3_f32 v20, v20, v106, v107\nv_max_f32 v20, v20, v21")
        xsum_g(A, "v20", "v21", "v_max_f32")
        stamp(A, 3, 2)
        A("v_mul_f32 v20, s70, v20")
        for r in range(0, 12, 2): A("v_pk_fma_f32 v[%d:%d], v[%d:%d], s[70:71], v[20:21] op_sel_hi:[1,0,0] neg_lo:[0,0,1] neg_hi:[0,0,1]" % (104 + r, 105 + r, 104 + r, 105 + r))
        for r in range(12): A("v_exp_f32 v%d, v%d" % (104 + r, 104 + r))
        A("v_pk_add_f32 v[20:21], v[104:105], v[106:107]\nv_pk_add_f32 v[22:23], v[108:109], v[110:111]\nv_pk_add_f32 v[20:21], v[20:21], v[112:113]\nv_pk_add_f32 v[22:23], v[22:23], v[114:115]")
        A("v_pk_add_f32 v[20:21], v[20:21], v[22:23]\nv_add_f32 v20, v20, v21")
        xsum_g(A, "v20", "v21")
        stamp(A, 4, 2)
        A("v_rcp_f32 v20, v20\ns_nop 0")
        for r in (4, 8, 6, 10, 0, 2): A("v_pk_mul_f32 v[%d:%d], v[%d:%d], v[20:21] op_sel_hi:[1,0]" % (104 + r, 105 + r, 104 + r, 105 + r))
        ph = "s69" if tok else "s68"
        if tok: order = [(76, 108), (77, 110), (78, 112), (79, 114), (80, 104), (81, 106)]
        else: order = [(76, 108), (77, 112), (78, 110), (79, 114), (80, 104), (81, 106)]
        for d, s_ in order: A("v_cvt_pk_bf16_f32 v%d, v%d, v%d" % (d, s_, s_ + 1))
        for d, s_ in order: A("v_and_or_b32 v%d, v%d, v121, %s" % (d, d, ph))
        if tok:
            local_store(A, ool, ["global_store_dwordx4 v18, v[76:79], s[62:63]", "s_mov_b64 exec, s[72:73]", "global_store_dwordx2 v19, v[80:81], s[62:63]", "s_mov_b64 exec, -1"])
        else:
            local_store(A, ool, ["s_mov_b64 exec, s[74:75]", "global_store_dwordx2 v18, v[76:77], s[4:5]", "global_store_dwordx2 v18, v[78:79], s[4:5] offset:128",
                                 "s_mov_b64 exec, s[76:77]", "global_store_dwordx2 v19, v[80:81], s[4:5]", "s_mov_b64 exec, -1"])
    s_phase(False)
    A("s_branch QK_join")
    A.label("QK_wT")
    s_phase(True)
    A("s_branch QK_join")
    A.label("QK_w1")
    A("s_sleep 2")
    A("v_lshlrev_b32 v20, 4, v1\nv_add_u32 v20, s45, v20\nv_add_u32 v20, %d, v20" % Q_MEMA)
    for r in range(4): A("v_mov_b32 v%d, -1" % (116 + r))
    for i in range(10): A("ds_write_b128 v20, v[116:119] offset:%d" % (i * 1024))
    A.label("QK_join")
    stamp(A, 4); stamp(A, 5, 2)
    A("s_waitcnt lgkmcnt(0)\ns_barrier")
    stamp(A, 5)
    stamp_out(A, 20)
    A("s_add_u32 s44, s44, 1\ns_cmp_ge_u32 s44, %d\ns_cbranch_scc1 QK_done" % nsteps)
    A("s_add_u32 s47, s44, 1\ns_min_u32 s47, s47, %d" % (nsteps - 1))
    kq_wait("s47")
    kq_base("s47", KT, 96); kq_base("s44", QT, 98)
    A("s_sub_u32 s48, s88, s87\ns_mov_b32 s49, s87\ns_mov_b32 s87, s88\ns_mov_b32 s88, s49\nv_add_u32 v16, s48, v16")
    A("s_xor_b32 s68, s68, 0x80008000")
    A("s_and_b32 s48, s44, 1\ns_cmp_eq_u32 s48, 0\ns_cselect_b32 s49, 0x80008000, 0\ns_xor_b32 s69, s69, s49")
    A("s_mul_i32 s48, s48, 81920\ns_add_u32 s62, s4, s48\ns_addc_u32 s63, s5, 0")
    A("s_add_u32 s60, s60, 40960\ns_addc_u32 s61, s61, 0")
    A("s_xor_b32 s45, s45, 10240")
    A("s_lshl_b32 s48, s45, 1\ns_sub_u32 s48, s48, 10240")
    for v in (5, 6, 7, 127): A("v_add_u32 v%d, s48, v%d" % (v, v))
    if TUNE["sl_q"]: A("s_sleep %d" % TUNE["sl_q"])
    A("s_branch QK_step")
    A.label("QK_done")
    A("s_endpgm")

R_MEMA = 0
XRING = 983040
def role_red(A, ool, nsteps=64, psleep=0):
    A.c("==== role RED : s40=x s41=j ; wave = ct*2+hh")
    handshake_send(A)
    A("s_mov_b32 s57, 0x%x\ns_load_dword s57, s[4:5], s57" % CALW)
    A("s_lshr_b32 s54, s3, 1\ns_and_b32 s55, s3, 1")
    A("s_mul_i32 s48, s40, 20\ns_add_u32 s48, s48, s41\ns_lshl_b32 s48, s48, 2\ns_add_u32 s48, s48, s3\ns_mul_i32 s48, s48, 81920\ns_add_u32 s48, s48, 0x%x" % BW)
    A("s_add_u32 s8, s4, s48\ns_addc_u32 s9, s5, 0\nv_lshlrev_b32 v9, 4, v1\nv_lshlrev_b32 v4, 4, v0\ns_lshl_b32 s92, s3, 10")
    A.vm_q = []
    W0 = 192
    for n in range(80):
        A.vm("global_load_dwordx4 %s, v9, s[8:9] offset:%d" % (ur(W0 + 4 * n, 4), (n % 4) * 1024))
        if n % 4 == 3: A("s_add_u32 s8, s8, 4096\ns_addc_u32 s9, s9, 0")
    wreg = lambda t, kk: W0 + t * 80 + kk * 4
    mem_setup(A, R_MEMA, 5, 6, 7, 8, 85)
    A("s_lshl_b32 s56, s40, 1\ns_add_u32 s56, s56, s55")
    A("s_mul_i32 s48, s56, 3072\ns_add_u32 s48, s48, 0x%x\nv_add_u32 v10, s48, v9" % PM)
    A("s_mul_i32 s48, s56, 10240\ns_mul_i32 s49, s54, 5120\ns_add_u32 s48, s48, s49\ns_add_u32 s48, s48, 0x%x\nv_add_u32 v18, s48, v9\nv_add_u32 v189, 4096, v18" % PT)
    A("s_mul_i32 s87, s55, 10240\ns_add_u32 s87, s87, 20480\nv_add_u32 v190, s87, v9\ns_add_u32 s87, s87, s49")
    A("s_mul_i32 s48, s56, 2621440\ns_lshl_b32 s49, s41, 1\ns_add_u32 s49, s49, s54\ns_lshl_b32 s50, s49, 9\ns_add_u32 s48, s48, s50\ns_add_u32 s48, s48, 0x%x" % OP)
    A("v_lshlrev_b32 v19, 3, v1\nv_add_u32 v19, s48, v19\nv_add_u32 v191, 20480, v19")
    A("s_waitcnt lgkmcnt(0)")
    xr_base(A, "s58", "s4")
    A("s_xor_b32 s59, s57, 8192\ns_add_u32 s59, s59, s58\ns_add_u32 s58, s58, s57")
    def vmap(v): A("v_lshrrev_b32 v23, 13, %s\nv_lshlrev_b32 v23, 13, v23\nv_add_u32 %s, %s, v23" % (v, v, v))
    A("v_and_b32 v20, 15, v1\nv_lshlrev_b32 v20, 4, v20\nv_bfe_u32 v21, v1, 4, 1\nv_lshrrev_b32 v22, 5, v1")
    A("v_add_u32 v12, s40, v22\nv_add_u32 v12, 1, v12\nv_and_b32 v12, 3, v12\nv_mul_u32_u24 v12, 80, v12")
    A("s_lshl_b32 s50, s49, 1\nv_add_u32 v12, s50, v12\nv_add_u32 v12, v12, v21\nv_mul_u32_u24 v12, 6, v12")
    A("v_lshl_add_u32 v12, v22, 1, v12\nv_add_u32 v12, s55, v12\nv_lshl_add_u32 v12, v12, 8, v20"); vmap("v12"); A("v_add_u32 v12, s58, v12")
    A("s_add_u32 s51, s40, 3\ns_and_b32 s51, s51, 3\ns_mul_i32 s51, s51, 80\ns_add_u32 s51, s51, s50")
    A("v_add_u32 v13, s51, v21\nv_mul_u32_u24 v13, 6, v13\nv_add_u32 v13, 4, v13\nv_add_u32 v13, s55, v13\nv_lshl_add_u32 v13, v13, 8, v20"); vmap("v13"); A("v_add_u32 v13, s58, v13")
    A("s_mul_i32 s51, s40, 80\ns_add_u32 s51, s51, s50")
    A("v_add_u32 v14, s51, v21\nv_lshlrev_b32 v14, 1, v14\nv_add_u32 v14, s55, v14\nv_lshl_add_u32 v14, v14, 8, v20"); vmap("v14"); A("v_add_u32 v14, s59, v14")
    A("s_add_u32 s51, s51, s55\ns_mul_i32 s52, s51, 1536\nv_add_u32 v15, s52, v9"); vmap("v15"); A("v_add_u32 v15, s58, v15")
    A("s_add_u32 s52, s52, 1024\nv_lshl_add_u32 v16, v21, 8, v20\nv_add_u32 v17, s52, v16"); vmap("v17"); A("v_add_u32 v17, s58, v17")
    A("s_lshl_b32 s52, s51, 9\nv_add_u32 v16, s52, v16"); vmap("v16"); A("v_add_u32 v16, s59, v16")
    A("v_cmp_eq_u32 vcc, 0, v22\ns_nop 1\nv_cndmask_b32 v16, v16, v17, vcc")
    A("s_lshl_b32 s48, s41, 9\ns_lshl_b32 s49, s54, 7\ns_add_u32 s48, s48, s49\ns_lshl_b32 s49, s55, 3\ns_add_u32 s48, s48, s49")
    A("v_and_b32 v17, 3, v1\nv_lshlrev_b32 v17, 4, v17")
    for bit, sh in ((2, 8), (3, 6), (5, 1), (4, 2)):
        A("v_bfe_u32 v23, v1, %d, 1\nv_lshl_add_u32 v17, v23, %d, v17" % (bit, sh))
    A("v_add_u32 v17, s48, v17\nv_add_u32 v17, 40960, v17")
    A("s_mov_b32 s74, 0x00ff00ff\ns_mov_b32 s75, 0x00ff00ff\ns_mov_b32 s72, 0\ns_mov_b32 s73, -1\ns_mov_b32 s76, -1\ns_mov_b32 s77, 0\ns_mov_b32 s78, 0xfffe\ns_mov_b32 s79, 0x80008000")
    POOL, YA, DA, RS, PR = 24, 64, 108, 116, 156
    PTP = POOL
    for r in range(12): A("v_mov_b32 v%d, 0" % (PR + r))
    for r in range(4): A("v_mov_b32 v%d, -1" % (20 + r))
    A("v_lshlrev_b32 v11, 4, v0\nv_add_u32 v11, %d, v11" % R_MEMA)
    for i in range(5): A("ds_write_b128 v11, v[20:23] offset:%d" % (i * 4096))
    for i in range(10): A("ds_write_b128 v11, %s offset:%d" % (vr(PR, 4), 20480 + i * 4096))
    A("v_add_u32 v11, %d, v5" % R_MEMA)
    handshake_recv(A)
    A.vm_q = []
    A("s_waitcnt vmcnt(0) lgkmcnt(0)\ns_barrier")
    A("s_lshl_b32 s48, s56, 2\ns_mul_i32 s49, s48, 40960\ns_lshl_b32 s50, s41, 1\ns_add_u32 s50, s50, s54\ns_lshl_b32 s50, s50, 10\ns_add_u32 s49, s49, s50\ns_add_u32 s49, s49, 0x%x" % UT)
    A("v_add_u32 v80, s49, v9")
    for i in range(1, 4): A("v_add_u32 v%d, 40960, v%d" % (80 + i, 79 + i))
    A("s_lshl_b32 s48, s48, 8\ns_add_u32 s48, s48, 0x%x\nv_lshlrev_b32 v84, 2, v1\nv_add_u32 v84, s48, v84\ns_mov_b64 s[84:85], 0" % FL_U)
    uwait = mask_wait(A, [(84, 256 * i) for i in range(4)])
    USTG = 168
    def u_load(ssg, rs, wait=True):
        if wait: uwait(ssg)
        A("s_mul_i32 s48, %s, %d\ns_add_u32 s50, s4, s48\ns_addc_u32 s51, s5, 0" % (ssg, 32 * 40960))
        for i in range(4): A("global_load_dwordx4 %s, v%d, s[50:51] sc1" % (vr(rs + 4 * i, 4), 80 + i))
    A("s_mov_b32 s44, 0")
    u_load("s44", RS)
    A("s_mov_b32 s88, 0")
    A("s_mul_i32 s48, s40, 10240\ns_add_u32 s48, s48, 0x%x\ns_add_u32 s60, s4, s48\ns_addc_u32 s61, s5, 0" % MEMB)
    A("s_add_u32 s64, s4, %d\ns_addc_u32 s65, s5, 0" % XRING)
    A("s_add_u32 s62, s4, 81920\ns_addc_u32 s63, s5, 0")
    for r in range(16): A("v_mov_b32 v%d, 0" % (YA + r))
    def pt_issue_ops(ring):
        sb = "s[4:5]" if ring == 0 else "s[62:63]"
        return (["s_add_u32 m0, s87, %d" % (ring * 20480), "s_nop 0"] + ["global_load_lds_dwordx4 v18, %s offset:%d sc1" % (sb, n * 1024) for n in range(4)]
                + ["s_add_u32 m0, s87, %d" % (ring * 20480 + 4096), "s_nop 0", "global_load_lds_dwordx4 v189, %s sc1" % sb])
    def pr(tag, ring, rs, ssg, issued):
        L = tag + "_pt"; Lg = tag + "_ptg"; L1 = tag + "_pt1"
        A("s_bitcmp1_b32 %s, 1\ns_cselect_b32 s69, 0, 0x80008000\ns_cselect_b32 s71, 1.0, -1.0" % ssg)
        if issued: A("s_branch %s" % L1)
        A.label(L)
        for l in pt_issue_ops(ring): A(l)
        A("s_waitcnt vmcnt(0)")
        A.label(L1)
        for n in range(10): A("ds_read_b128 %s, v190 offset:%d" % (vr(PTP + 4 * n, 4), ring * 20480 + n * 1024))
        A("s_waitcnt lgkmcnt(0)")
        F = Filler()
        F.add(["v_bitop3_b32 v%d, v%d, v%d, s69 bitop3:0x7e" % (20 + n, PTP + 2 * n, PTP + 2 * n + 1) for n in range(4)])
        for n in range(4, 20):
            F.add(["v_bitop3_b32 v2, v%d, v%d, s69 bitop3:0x7e" % (PTP + 2 * n, PTP + 2 * n + 1), "v_or_b32 v%d, v%d, v2" % (20 + n % 4, 20 + n % 4)])
        for qt in range(2):
            for ks in range(5):
                A("v_mfma_f32_16x16x32_bf16 %s, %s, %s, %s" % (vr(PA + 4 * qt, 4), vr(rs + 4 * ks, 4), vr(PTP + (qt * 5 + ks) * 4, 4), "0" if ks == 0 else vr(PA + 4 * qt, 4)))
                F.gap(A, 2)
        F.flush(A)
        A("v_or3_b32 v20, v20, v21, v22\nv_or_b32 v20, v20, v23\nv_and_b32 v20, s79, v20\nv_cmp_ne_u32 vcc, 0, v20\ns_cbranch_vccz %s" % Lg)
        spin_guard(A, L)
        A.label(Lg)
        A("s_mul_i32 s48, %s, 40960\ns_add_u32 s50, s4, s48\ns_addc_u32 s51, s5, 0" % ssg)
        for r in range(8): A("v_mul_f32 v%d, s71, v%d" % (PA + r, PA + r))
        for r in range(4): A("v_cvt_pk_bf16_f32 v%d, v%d, v%d" % (PA + 8 + r, PA + 2 * r, PA + 2 * r + 1))
        A("global_store_dwordx2 v19, v[%d:%d], s[50:51]\nglobal_store_dwordx2 v191, v[%d:%d], s[50:51]" % (PA + 8, PA + 9, PA + 10, PA + 11))
    PA, XG = 88, 100
    for pz in range(2):
        T = "RD%d" % pz
        Rc = RS + 20 * pz; Ro = RS + 20 * (pz ^ 1)
        A.label(T + "_top")
        A("s_barrier")
        for r in range(4): A("v_mov_b32 v%d, -1" % (20 + r))
        A("ds_write_b128 v11, v[20:23] offset:%d\nds_write_b128 v11, v[20:23] offset:%d" % ((pz ^ 1) * 10240, (pz ^ 1) * 10240 + 1024))
        Lr = A.newlabel("RS")
        A("s_cmp_ge_u32 s3, 2\ns_cbranch_scc1 %s\nds_write_b128 v11, v[20:23] offset:%d" % (Lr, (pz ^ 1) * 10240 + 2048))
        A.label(Lr)
        for l in pt_issue_ops(pz ^ 1): A(l)
        A("s_add_u32 m0, s67, %d\ns_nop 0" % (R_MEMA + pz * 10240))
        mem_poll(A, T, 5, 7, 8, 85, 24)
        stamp(A, 0)
        ool.b.append("%s_retry:\ns_nop 7\n" % T + "\n".join("v_mov_b32 v%d, 0" % (YA + r) for r in range(16)) + "\ns_branch %s_poll" % T)
        A.lds_q = []
        a_reads(A, POOL, 6)
        Le = A.newlabel("UE")
        A("s_add_u32 s47, s44, 1\ns_min_u32 s47, s47, 63\ns_bitcmp1_b64 s[84:85], s47\ns_cselect_b32 s88, 1, 0\ns_cbranch_scc0 %s" % Le)
        u_load("s47", USTG, wait=False)
        A.label(Le)
        for q in range(10):
            A.need_lds(("A", q, 1))
            for t in range(4):
                A("v_smfmac_f32_16x16x64_bf16 %s, %s, %s, v3" % (vr(YA + 4 * t, 4), vr(POOL + 4 * q, 4), ur(W0 + t * 80 + q * 8, 8)))
        A("s_mov_b32 s48, %d" % (10240 if pz == 0 else -10240))
        A("s_bitcmp1_b32 s44, 1\ns_cselect_b32 s68, 0, 1\ns_xor_b32 s49, s68, 1\ns_add_u32 s47, s44, 1")
        A("s_nop 0")
        nan_check(A, ool, T, YA, POOL, 22, 23, T + "_retry")
        A("s_mov_b32 s48, %d" % (10240 if pz == 0 else -10240))
        for v in (6, 7, 8, 85): A("v_add_u32 v%d, s48, v%d" % (v, v))
        for l in pair_sum_ops(YA, YA + 4, Rc + 16) + pair_sum_ops(YA + 8, YA + 12, Rc + 18): A(l)
        Lfin = T + "_fin"
        stamp(A, 5)
        A("s_cmp_eq_u32 s44, %d\ns_cbranch_scc1 %s" % (nsteps - 1, Lfin))
        A("s_xor_b32 s49, s68, 1\ns_waitcnt vmcnt(4)")
        for r in range(8): A("v_mov_b32 v%d, s49" % (XG + r))
        for r in range(16): A("v_mov_b32 v%d, 0" % (YA + r))
        if TUNE["sl_p"]: A("s_sleep %d" % TUNE["sl_p"])
        xb = "s[4:5]" if pz == 0 else "s[64:65]"
        L = T + "_pp"; Lg = T + "_pg"
        stamp(A, 1)
        if TUNE["pmode"]:
            A("s_mov_b64 exec, s[74:75]")
            A.label(L + "l")
            A("global_load_dwordx4 %s, v10, s[4:5] offset:2048 sc1\ns_waitcnt vmcnt(%d)" % (vr(PR + 8, 4), TUNE["pthr"]))
            if TUNE["pmode"] == 1:
                A("%s v20, v%d, v%d\nv_and_b32 v20, s79, v20" % ("v_or_b32" if pz == 0 else "v_and_b32", PR + 8, PR + 10))
                A("v_cmp_ne_u32 vcc, %s, v20\ns_cbranch_vccnz %s" % ("0" if pz == 0 else "s79", L + "m"))
            else:
                A("%s v20, v%d, v%d\nv_and_b32 v20, s79, v20" % ("v_and_b32" if pz == 0 else "v_or_b32", PR + 8, PR + 10))
                A("v_cmp_ne_u32 vcc, %s, v20\ns_cbranch_vccz %s" % ("s79" if pz == 0 else "0", L + "m"))
            spin_guard(A, L + "l")
            A.label(L + "m")
            A("s_mov_b64 exec, -1")
        A.label(L)
        A("global_load_dwordx4 %s, v10, s[4:5] sc1\nglobal_load_dwordx4 %s, v10, s[4:5] offset:1024 sc1" % (vr(PR, 4), vr(PR + 4, 4)))
        A("s_mov_b64 exec, s[74:75]\nglobal_load_dwordx4 %s, v10, s[4:5] offset:2048 sc1\ns_mov_b64 exec, -1" % vr(PR + 8, 4))
        A("s_waitcnt vmcnt(3)")
        b3 = "0x80" if pz == 0 else "0xfe"
        op2 = "v_and_b32" if pz == 0 else "v_or_b32"
        A("v_bitop3_b32 v20, v%d, v%d, v%d bitop3:%s\nv_bitop3_b32 v21, v%d, v%d, v%d bitop3:%s" % (PR, PR + 1, PR + 2, b3, PR + 8, PR + 9, PR + 10, b3))
        A("v_bitop3_b32 v22, v%d, v%d, v%d bitop3:%s\n%s v21, v21, v%d" % (PR + 3, PR + 4, PR + 5, b3, op2, PR + 11))
        A("v_bitop3_b32 v20, v20, v%d, v%d bitop3:%s\nv_cndmask_b32 v21, v22, v21, s[74:75]" % (PR + 6, PR + 7, b3))
        A("v_bitop3_b32 v20, v20, v21, v22 bitop3:%s\nv_and_b32 v20, s79, v20" % b3)
        A("v_cmp_ne_u32 vcc, %s, v20\ns_cbranch_vccz %s" % ("s79" if pz == 0 else "0", Lg))
        spin_guard(A, L)
        A.label(Lg)
        stamp(A, 2)
        A("v_mfma_f32_16x16x32_bf16 %s, %s, %s, 0" % (vr(DA, 4), vr(PR + 8, 4), vr(Rc + 16, 4)))
        A("v_smfmac_f32_16x16x64_bf16 %s, %s, %s, v3" % (vr(DA, 4), vr(PR, 4), vr(Rc, 8)))
        A("v_smfmac_f32_16x16x64_bf16 %s, %s, %s, v3" % (vr(DA, 4), vr(PR + 4, 4), vr(Rc + 8, 8)))
        A("s_nop 7")
        for r in range(4): A("v_mov_b32 v%d, v%d" % (DA + 4 + r, DA + r))
        for r in range(4): A("v_permlane32_swap_b32 v%d, v%d" % (DA + r, DA + 4 + r))
        ng = "-" if pz == 0 else ""
        for r in range(4): A("v_add_f32 v%d, %sv%d, %sv%d" % (DA + r, ng, DA + r, ng, DA + 4 + r))
        for r in range(4): A("v_and_or_b32 v%d, v%d, -2, s68" % (DA + r, DA + r))
        A("global_store_dwordx4 v12, %s, %s sc1" % (vr(DA, 4), xb))
        A("s_mov_b64 exec, s[76:77]\nglobal_store_dwordx4 v13, %s, %s sc1\ns_mov_b64 exec, s[72:73]" % (vr(DA, 4), xb))
        local_store(A, ool, ["global_store_dwordx4 v14, %s, %s" % (vr(DA, 4), xb)])
        A("s_mov_b64 exec, -1")
        L = T + "_xp"; Lg = T + "_xg"
        stamp(A, 3)
        if pz == 0: A("s_cmp_eq_u32 s44, 0\ns_cbranch_scc1 %s_nopr" % T)
        A("s_sub_u32 s46, s44, 1")
        pr(T, pz ^ 1, Ro, "s46", True)
        A.label(T + "_nopr")
        Ll = A.newlabel("UL"); Lc = A.newlabel("UC")
        A("s_cmp_eq_u32 s88, 0\ns_cbranch_scc1 %s" % Ll)
        for r in range(16): A("v_mov_b32 v%d, v%d" % (Ro + r, USTG + r))
        A.label(Lc)
        B = A.l; A.l = []
        A.label(Ll); u_load("s47", Ro); A("s_branch %s" % Lc)
        ool.b.append("\n".join(A.l)); A.l = B
        if TUNE["sl_x"]: A("s_sleep %d" % TUNE["sl_x"])
        A.label(L)
        A("global_load_dwordx4 %s, v15, %s sc1\nglobal_load_dwordx4 %s, v16, %s sc1" % (vr(XG, 4), xb, vr(XG + 4, 4), xb))
        A("s_waitcnt vmcnt(%d)" % TUNE["xthr"])
        for r in range(4): A("v_bitop3_b32 v%d, v%d, v%d, s68 bitop3:0x7e" % (20 + r, XG + 2 * r, XG + 2 * r + 1))
        A("v_or3_b32 v20, v20, v21, v22\nv_or_b32 v20, v20, v23\nv_and_b32 v20, 1, v20")
        A("v_cmp_ne_u32 vcc, 0, v20\ns_cbranch_vccz %s" % Lg)
        spin_guard(A, L)
        A.label(Lg)
        E = DA + 4
        for r in range(4): A("v_add_f32 v%d, v%d, v%d" % (E + r, XG + r, XG + 4 + r))
        A("s_nop 0\nv_permlane32_swap_b32 v%d, v%d\nv_permlane32_swap_b32 v%d, v%d" % (E, E + 1, E + 2, E + 3))
        A("v_add_f32 v%d, v%d, v%d\nv_add_f32 v%d, v%d, v%d\ns_nop 1" % (E, E, E + 1, E + 2, E + 2, E + 3))
        A("v_permlane16_swap_b32 v%d, v%d\nv_add_f32 v%d, v%d, v%d" % (E, E + 2, E, E, E + 2))
        A("v_cvt_pk_bf16_f32 v%d, v%d, 0\nv_min_u32 v%d, s78, v%d" % (E, E, E, E))
        local_store(A, ool, ["global_store_short v17, v%d, s[60:61]" % E])
        stamp(A, 4)
        stamp_out(A, 20)
        if TUNE["sl_pub"]: A("s_sleep %d" % TUNE["sl_pub"])
        A("s_add_u32 s44, s44, 1\ns_add_u32 s60, s60, 40960\ns_addc_u32 s61, s61, 0")
        A("s_branch RD%d_top" % (pz ^ 1))
        A.label(Lfin)
        A("s_waitcnt vmcnt(0)\ns_sub_u32 s46, s44, 1")
        pr(T + "e", pz ^ 1, Ro, "s46", True)
        pr(T + "f", pz, Rc, "s44", False)
        A("s_endpgm")

def role_pf(A, nsteps=64):
    A.c("==== role PF")
    A("s_load_dwordx2 s[6:7], s[0:1], %d" % K_DBG)
    A("s_lshl_b32 s42, s40, 3\ns_lshl_b32 s48, s41, 1\ns_add_u32 s42, s42, s48")
    A("v_lshlrev_b32 v8, 7, v1")
    Lw = A.newlabel("PFW"); Lj = A.newlabel("PFJ")
    A("s_mul_i32 s48, s42, 40960\ns_add_u32 s48, s48, 0x%x\ns_mul_i32 s49, s42, 12288" % UT)
    A("s_mov_b32 s56, %d\ns_mov_b32 s57, %d" % (32 * 40960, 32 * 40960))
    A("s_cmp_eq_u32 s3, 0\ns_cbranch_scc1 %s" % Lw)
    A("s_sub_u32 s50, s3, 1\ns_lshl_b32 s50, s50, 15\ns_add_u32 s50, s50, s48\nv_add_u32 v10, s50, v8\nv_add_u32 v11, 8192, v10\nv_add_u32 v12, 16384, v10\nv_add_u32 v13, 24576, v10")
    A("s_cmp_lg_u32 s3, 3\ns_cbranch_scc1 %s" % Lj)
    A("s_add_u32 s50, s49, 0x%x\nv_add_u32 v12, s50, v8\ns_add_u32 s50, s49, 0x%x\nv_add_u32 v13, s50, v8\ns_mov_b32 s57, %d\ns_branch %s" % (KT + 16384, QT + 16384, 32 * 12288, Lj))
    A.label(Lw)
    A("s_add_u32 s50, s49, 0x%x\nv_add_u32 v10, s50, v8\nv_add_u32 v11, 8192, v10\ns_add_u32 s50, s49, 0x%x\nv_add_u32 v12, s50, v8\nv_add_u32 v13, 8192, v12" % (KT, QT))
    A("s_mov_b32 s56, %d\ns_mov_b32 s57, %d" % (32 * 12288, 32 * 12288))
    A.label(Lj)
    A("s_lshl_b32 s48, s42, 8\ns_add_u32 s48, s48, 0x%x\nv_lshlrev_b32 v14, 2, v1\nv_add_u32 v14, s48, v14\nv_add_u32 v15, 0x2000, v14\nv_add_u32 v16, 0x6000, v14\ns_mov_b64 s[84:85], 0" % FL_K)
    w = mask_wait(A, [(14, 0), (14, 256), (15, 0), (15, 256), (16, 0), (16, 256)])
    A("s_mul_i32 s59, s40, 10240\ns_add_u32 s59, s59, 0x%x\ns_add_u32 s60, s4, s59\ns_addc_u32 s61, s5, 0" % MEMB)
    A("s_mov_b32 s44, 0\ns_waitcnt lgkmcnt(0)")
    A.label("PF_loop")
    w("s44")
    A("s_cmp_lt_u32 s44, 2\ns_cbranch_scc1 PF_go")
    A("s_max_u32 s48, s44, 4\ns_sub_u32 s48, s48, 4\ns_lshl_b32 s48, s48, 10\ns_mul_i32 s49, s40, 256\ns_add_u32 s48, s48, s49\ns_add_u32 s48, s48, 0x%x\nv_mov_b32 v17, s48" % FL_O)
    A("s_sub_u32 s48, s44, 2\ns_and_b32 s48, s48, 3\ns_mul_i32 s48, s48, 40960\ns_add_u32 s48, s48, s59\ns_add_u32 s60, s4, s48\ns_addc_u32 s61, s5, 0")
    A.label("PF_poll")
    A("global_load_dword v9, v8, s[60:61] sc1\nglobal_load_dword v18, v17, s[4:5] sc1\ns_waitcnt vmcnt(0)\nv_cmp_eq_u32 vcc, -1, v9\ns_cbranch_vccz PF_adv")
    A("v_cmp_ne_u32 vcc, 1, v18\ns_cbranch_vccz PF_go\ns_sleep 3")
    spin_guard(A, "PF_poll")
    A.label("PF_adv")
    A("s_sleep %d" % TUNE["sl_pf"])
    A.label("PF_go")
    A("s_mul_i32 s48, s44, s56\ns_add_u32 s50, s4, s48\ns_addc_u32 s51, s5, 0\ns_mul_i32 s48, s44, s57\ns_add_u32 s52, s4, s48\ns_addc_u32 s53, s5, 0")
    A("global_load_dword v24, v10, s[50:51]\nglobal_load_dword v25, v11, s[50:51]\nglobal_load_dword v26, v12, s[52:53]\nglobal_load_dword v27, v13, s[52:53]")
    A("s_add_u32 s44, s44, 1\ns_cmp_lt_u32 s44, %d\ns_cbranch_scc1 PF_loop\ns_endpgm" % nsteps)

def gen_k2(A, use_flags=True, with_bulk=True, nsteps=64):
    ool = OOL()
    kernel_head(A, "main_kernel")
    A("s_cmp_ge_u32 s2, 256\ns_cbranch_scc1 K2_exit")
    code_touch(A, "K2_last", 98304, vdst=5, sb=96)
    prologue_common(A)
    A("s_and_b32 s40, s2, 7\ns_lshr_b32 s41, s2, 3\ns_mov_b32 s66, 0\ns_mov_b32 s95, 0xffff0000")
    A("s_cmp_ge_u32 s40, 4\ns_cbranch_scc1 K2_bulk")
    A("s_cmp_ge_u32 s41, 28\ns_cbranch_scc1 %s" % ("K2_pf" if TUNE["pf"] else "K2_exit"))
    A("s_cmp_ge_u32 s41, 8\ns_cbranch_scc1 K2_red")
    role_qk(A, ool, use_flags, nsteps)
    A.label("K2_red")
    A("s_sub_u32 s41, s41, 8")
    role_red(A, ool, nsteps)
    A.label("K2_pf")
    A("s_sub_u32 s41, s41, 28")
    role_pf(A, nsteps)
    for b in ool.b: A(b)
    A.label("K2_abort")
    A("v_mov_b32 v20, 64\nv_mov_b32 v21, s2\nv_add_u32 v21, 0x10000, v21\nglobal_store_dword v20, v21, s[6:7]")
    A.label("K2_exit")
    A("s_endpgm")
    A.label("K2_bulk")
    if with_bulk:
        A("s_sub_u32 s40, s40, 4\ns_lshl_b32 s41, s41, 2\ns_add_u32 s40, s40, s41")
        def bst(k):
            if STAMPS: A("s_memrealtime s[%d:%d]" % (94 + 2 * k, 95 + 2 * k))
        bst(0)
        A("s_cmp_ge_u32 s40, 96\ns_cbranch_scc1 K2_ug")
        role_proj(A, "s40")
        A("s_branch K2_ffn")
        A.label("K2_ug")
        role_ug(A, "s40")
        A.label("K2_ffn")
        bst(1)
        role_ffn1(A, "s40"); bst(2)
        role_ffn2(A, "s40"); bst(3)
        if STAMPS:
            A("s_waitcnt lgkmcnt(0)\ns_lshl_b32 s48, s40, 4\ns_add_u32 s48, s48, 0x%x\nv_mov_b32 v2, s48\nv_mov_b32 v4, s94\nv_mov_b32 v5, s96\nv_mov_b32 v6, s98\nv_mov_b32 v7, s100" % (STB + 0x300000))
            A("global_store_dwordx4 v2, v[4:7], s[4:5]")
    A("s_endpgm")
    A.label("K2_last")
    return kernel_desc("main_kernel", 512, 102, 256)

def gen_k3(A):
    kernel_head(A, "fin_kernel")
    A("s_cmp_ge_u32 s2, 320\ns_cbranch_scc1 K3_exit")
    A("s_load_dwordx2 s[6:7], s[0:1], %d" % K_OUT)
    prologue_common(A)
    A("s_lshl_b32 s8, s2, 2\ns_add_u32 s8, s8, s3")
    A("s_mul_i32 s9, s8, 6554\ns_lshr_b32 s9, s9, 16\ns_mul_i32 s10, s9, 10\ns_sub_u32 s10, s8, s10")
    A("s_lshl_b32 s11, s8, 12\ns_add_u32 s11, s11, 0x%x\ns_add_u32 s12, s4, s11\ns_addc_u32 s13, s5, 0" % BASE)
    A("s_lshl_b32 s11, s8, 11\ns_add_u32 s11, s11, 0x%x\ns_add_u32 s14, s4, s11\ns_addc_u32 s15, s5, 0" % OP)
    A("v_lshlrev_b32 v3, 4, v1\nv_lshlrev_b32 v4, 3, v1")
    for c in range(4): A("global_load_dwordx4 v[%d:%d], v3, s[12:13] offset:%d" % (8 + 4 * c, 11 + 4 * c, c * 1024))
    for p in range(8):
        for c in range(4): A("global_load_dwordx2 v[%d:%d], v4, s[14:15] offset:%d" % (24 + (p * 4 + c) * 2, 25 + (p * 4 + c) * 2, c * 512))
        if p < 7: A("s_add_u32 s14, s14, 2621440\ns_addc_u32 s15, s15, 0")
    A("s_mul_i32 s11, s9, 20480\ns_lshl_b32 s10, s10, 7\ns_add_u32 s11, s11, s10\ns_add_u32 s6, s6, s11\ns_addc_u32 s7, s7, 0")
    A("v_and_b32 v5, 15, v1\nv_mul_u32_u24 v5, 1280, v5\nv_lshrrev_b32 v6, 4, v1\nv_lshl_add_u32 v5, v6, 3, v5")
    for p in range(8):
        A("s_waitcnt vmcnt(%d)" % ((7 - p) * 4))
        for c in range(4):
            for h in range(2):
                s = 24 + (p * 4 + c) * 2 + h; a = 8 + 4 * c + 2 * h
                A("v_lshlrev_b32 v6, 16, v%d\nv_and_b32 v7, 0xffff0000, v%d\nv_add_f32 v%d, v%d, v6\nv_add_f32 v%d, v%d, v7" % (s, s, a, a, a + 1, a + 1))
    for c in range(4):
        a = 8 + 4 * c
        A("v_cvt_pk_bf16_f32 v%d, v%d, v%d\nv_cvt_pk_bf16_f32 v%d, v%d, v%d" % (a, a, a + 1, a + 1, a + 2, a + 3))
        A("global_store_dwordx2 v5, v[%d:%d], s[6:7] offset:%d" % (a, a + 1, c * 32))
    A.label("K3_exit")
    A("s_endpgm")
    A.label("ALL_last")
    return kernel_desc("fin_kernel", 88, 24)
```

```python
from fw import *
from bulk import *
from k1 import xsum_g, xr_base, CALW
import rec, bulk, k1b
from rec import (SCALE_L2E, stamp, stamp_out, OOL, local_store, spin_guard, chk_final, role_pf)
TUNE = rec.TUNE
NGRP = 26
def handshake_send(A): rec.handshake_send(A)
def handshake_recv(A):
    n = len(A.l); rec.handshake_recv(A)
    init_wait(A)
    A.l[n:] = [x.replace("s_cmp_eq_u32 s49, 28", "s_cmp_eq_u32 s49, %d" % NGRP).replace("s_mul_i32 s48, s48, 28", "s_mul_i32 s48, s48, %d" % NGRP) for x in A.l[n:]]
def nan_check(A, ool, tag, acc, vraw, t0, Lretry):
    Lb = tag + "_nan"; Lc = tag + "_nanc"
    A("v_cmp_u_f32 vcc, v%d, v%d\nv_cmp_u_f32 s[48:49], v%d, v%d\ns_or_b64 vcc, vcc, s[48:49]\ns_cbranch_vccnz %s" % (acc, acc + 1, acc + 2, acc + 3, Lb))
    A.label(Lc)
    B = Asm(); B.label(Lb)
    B("v_mov_b32 v%d, 0\nv_mov_b32 v%d, 0" % (t0 + 4, t0 + 5))
    for i in range(10):
        B("ds_read_b128 %s, v%d offset:%d\ns_waitcnt lgkmcnt(0)" % (vr(t0, 4), vraw, i * 1024))
        for r in range(4): B("v_pk_max_u16 v%d, v%d, v%d" % (t0 + 4 + (r & 1), t0 + 4 + (r & 1), t0 + r))
    chk_final(B, t0 + 4, t0 + 5, Lb + "r")
    B("s_branch %s" % Lc)
    B.label(Lb + "r"); spin_guard(B, Lretry)
    ool.b.append("\n".join(B.l))
def smf_stream(A, steps, a_rd, areg, F, stage_rd, AH=3, per_gap=1, burst=False):
    qs = []
    for q, _ in steps:
        if q not in qs: qs.append(q)
    pend = []
    for q in qs[:AH]: a_rd(q, 0); a_rd(q, 1)
    nxt = AH
    seen = set()
    for q, tiles in steps:
        if q not in seen:
            seen.add(q); A.need_lds(("A", q, 1))
            if nxt < len(qs): pend = [("a", qs[nxt], 0), ("a", qs[nxt], 1)] + pend; nxt += 1
        for acc, w in tiles:
            if w[0] == "L":
                while any(p[0] == "s" and p[1] == w[1] for p in pend): p = pend.pop(0); (a_rd(p[1], p[2]) if p[0] == "a" else A.lds(p[2], ("S", p[1])))
                A.need_lds(("S", w[1])); wr = vr(w[2], 8)
            else: wr = ur(w[1], 8)
            A("v_smfmac_f32_16x16x64_bf16 %s, %s, %s, v3" % (vr(acc, 4), vr(areg(q), 4), wr))
            if w[0] == "L" and w[3] is not None: pend += [("s", w[3], t) for t in stage_rd(w[3])]
            for rep in range(2 if (burst and len(pend) >= 3) else 1):
                if pend:
                    p = pend.pop(0); (a_rd(p[1], p[2]) if p[0] == "a" else A.lds(p[2], ("S", p[1])))
            F.gap(A, per_gap)
    assert not pend
def pstamp(A, k, out=False):
    if not rec.STAMPS: return
    A("s_memrealtime s[%d:%d]" % (14 + 2 * k, 15 + 2 * k))
    if out:
        A("s_waitcnt lgkmcnt(0)\ns_lshl_b32 s48, s2, 4\ns_add_u32 s48, s48, 0x%x\nv_mov_b32 v24, s48\nv_mov_b32 v20, s14\nv_mov_b32 v21, s16\nv_mov_b32 v22, s18\nv_mov_b32 v23, s20" % (STB + 0x320000))
        A("global_store_dwordx4 v24, v[20:23], s[4:5]")
def idx_reg(A):
    A("v_mov_b32 v3, 0x4444\nv_mov_b32 v20, 0xeeee\nv_and_b32 v21, 2, v1\nv_cmp_ne_u32 vcc, 0, v21\ns_nop 1\nv_cndmask_b32 v3, v3, v20, vcc")
def bits(A, dst, lst, t=20):
    for n, (b, sh) in enumerate(lst):
        A("v_bfe_u32 v%d, v1, %d, 1" % (t, b))
        A(("v_lshlrev_b32 v%d, %d, v%d" % (dst, sh, t)) if n == 0 else ("v_lshl_add_u32 v%d, v%d, %d, v%d" % (dst, t, sh, dst)))
def mem_setup(A, MEMA, vsrc, vtr, vtr2, vp):
    idx_reg(A)
    A("s_mul_i32 s67, s3, 3072\ns_cmp_eq_u32 s3, 3\ns_cselect_b32 s67, 8192, s67")
    A("s_mul_i32 s48, s3, 10\nv_min_u32 v2, 9, v1\nv_add_u32 v2, s48, v2\nv_lshlrev_b32 v2, 8, v2")
    A("v_lshlrev_b32 v%d, 4, v1\nv_add_u32 v%d, s67, v%d" % (vsrc, vsrc, vsrc))
    bits(A, vtr, [(5, 9), (3, 8), (3, 4), (0, 6), (1, 7), (4, 5), (2, 3)])
    A("v_add_u32 v%d, %d, v%d\nv_xor_b32 v%d, 16, v%d" % (vtr, MEMA, vtr, vtr2, vtr))
    A("v_bfe_u32 v20, v1, 1, 4\nv_lshlrev_b32 v20, 2, v20\nv_lshl_add_u32 v%d, v1, 6, v20\nv_add_u32 v%d, %d, v%d\nv_add_u32 v%d, 4096, v%d" % (vp[0], vp[0], MEMA, vp[0], vp[1], vp[0]))
    A("v_and_b32 v21, 31, v1\nv_lshl_add_u32 v%d, v21, 6, v20\nv_add_u32 v%d, %d, v%d" % (vp[2], vp[2], MEMA + 8192, vp[2]))
def mem_poll(A, tag, vsrc, vp, t0, thr, vl=None):
    L = tag + "_poll"; L3 = tag + "_n3"; Lg = tag + "_go"
    if vl is not None and TUNE["light"]:
        A("v_mov_b32 v%d, -1" % t0)
        A.label(tag + "_lp")
        A("global_load_dword v%d, v%d, s[60:61] sc1\ns_waitcnt vmcnt(%d)\nv_cmp_ne_u32 vcc, -1, v%d\ns_cbranch_vccnz %s_lg" % (t0, vl, TUNE["lthr"], t0, tag))
        spin_guard(A, tag + "_lp")
        A.label(tag + "_lg")
    t0 = 24
    A.label(L)
    A("global_load_lds_dwordx4 v%d, s[60:61] sc1\nglobal_load_lds_dwordx4 v%d, s[60:61] offset:1024 sc1" % (vsrc, vsrc))
    A("s_cmp_ge_u32 s3, 2\ns_cbranch_scc1 %s\nglobal_load_lds_dwordx4 v%d, s[60:61] offset:2048 sc1" % (L3, vsrc))
    A.label(L3)
    for rep in range(TUNE["nprobe"]):
        for k in range(3): A("ds_read_b32 v%d, v%d" % (t0 + k, vp[k]))
        A("s_waitcnt lgkmcnt(0)\nv_max3_u32 v%d, v%d, v%d, v%d\nv_cmp_eq_u32 vcc, -1, v%d\ns_cbranch_vccz %s" % (t0, t0, t0 + 1, t0 + 2, t0, Lg))
    A("s_waitcnt vmcnt(%d)" % thr)
    spin_guard(A, L)
    A.label(Lg)
def half_sum_ops(a, dst, neg=False):
    n = " neg_lo:[1,1] neg_hi:[1,1]" if neg else ""
    return ["v_pk_add_f32 v[%d:%d], v[%d:%d], v[%d:%d]%s" % (a, a + 1, a, a + 1, a + 2, a + 3, n), "v_cvt_pk_bf16_f32 v%d, v%d, v%d" % (dst, a, a + 1)]
def mem_slot(A, dst, add):
    A("s_add_u32 s48, s44, %d\ns_and_b32 s48, s48, 3\ns_mul_i32 s48, s48, 40960\ns_add_u32 s48, s48, s59\ns_add_u32 s%d, s4, s48\ns_addc_u32 s%d, s5, 0" % (add, dst, dst + 1))
def step_advance(A, regs):
    mem_slot(A, 60, 0)
    A("s_xor_b32 s45, s45, 10240\ns_lshl_b32 s48, s45, 1\ns_sub_u32 s48, s48, 10240")
    for v in regs: A("v_add_u32 v%d, s48, v%d" % (v, v))
def mem_base(A):
    A("s_mul_i32 s59, s40, 10240\ns_add_u32 s59, s59, 0x%x\ns_add_u32 s60, s4, s59\ns_addc_u32 s61, s5, 0\ns_mov_b32 s45, 0\ns_mov_b32 s44, 0" % MEMB)
def mema_fill(A, MEMA, t):
    for r in range(4): A("v_mov_b32 v%d, -1" % (t + r))
    A("v_lshlrev_b32 v%d, 4, v0\nv_add_u32 v%d, %d, v%d" % (t + 4, t + 4, MEMA, t + 4))
    for i in range(5): A("ds_write_b128 v%d, %s offset:%d" % (t + 4, vr(t, 4), i * 4096))
def mema_reset(A, vraw, t):
    for r in range(4): A("v_mov_b32 v%d, -1" % (t + r))
    for i in range(10): A("ds_write_b128 v%d, %s offset:%d" % (vraw, vr(t, 4), i * 1024))

Q_KTB, Q_QTB, Q_MEMA, Q_XB, Q_EX = 98304, 122880, 135168, 155648, 161792
def role_qk(A, ool, nsteps=64):
    A.c("==== role QK : s40=x s41=idx")
    pstamp(A, 0)
    A("s_load_dwordx4 s[8:11], s[0:1], %d" % K_WQ)
    handshake_send(A)
    A("s_lshl_b32 s42, s40, 3\ns_add_u32 s42, s42, s41")
    dma_src_regs(A, 384, 12288, 24, t0=20)
    A("s_mov_b32 s91, 384\ns_mul_i32 s56, s3, 3")
    for i in range(3):
        tr_addr_reg(A, 384, "s56", 8 + i, t0=20); A("s_add_u32 s56, s56, 1")
    A("s_mul_i32 s48, s42, 384\ns_add_u32 s8, s8, s48\ns_addc_u32 s9, s9, 0\ns_add_u32 s10, s10, s48\ns_addc_u32 s11, s11, 0")
    blk = {}; n = 0
    for p in range(3):
        for q in range(10): blk[(3 + p, q)] = 128 + 8 * n; n += 1
        for q in range(6): blk[(p, q)] = 128 + 8 * n; n += 1
    phys = {0: 7 * 12288}
    for r in range(7): phys[6 + r] = r * 12288
    for k in range(1, 6): phys[k] = 98304 + (k - 1) * 12288
    ch = []
    for kk in range(20): ch.append((10, 32 * 12288, [(t, blk[(3 + t, kk >> 1)] + 4 * (kk & 1)) for t in range(3)]))
    for kk in range(12): ch.append((8, 32 * 12288, [(t, blk[(t, kk >> 1)] + 4 * (kk & 1)) for t in range(3)]))
    for kk in range(12, 20): ch.append((8, 32 * 12288, None))
    A.vm_q = []; A.lds_q = []
    load_weights(A, 384, ch, [phys[i % 13] for i in range(40)], 24, 8, 28)
    pstamp(A, 1)
    for i in range(3): A("v_add_u32 v%d, 49152, v%d" % (11 + i, 8 + i))
    mem_setup(A, Q_MEMA, 4, 5, 119, (6, 7, 127))
    A("v_lshlrev_b32 v125, 4, v1\nv_add_u32 v125, %d, v125" % Q_MEMA)
    A("s_mul_i32 s48, s3, %d\ns_add_u32 s48, s48, %d" % (48 * 32, Q_XB))
    A("v_and_b32 v20, 15, v1\nv_lshlrev_b32 v14, 5, v20\nv_lshrrev_b32 v21, 4, v1\nv_lshl_add_u32 v14, v21, 2, v14\nv_add_u32 v14, s48, v14")
    A("v_add_u32 v117, 1024, v14")
    A("v_lshlrev_b32 v15, 3, v1\nv_add_u32 v113, %d, v15\nv_add_u32 v15, %d, v15" % (Q_EX, Q_XB))
    A("s_lshl_b32 s48, s3, 9\nv_add_u32 v114, s48, v113")
    A("v_lshlrev_b32 v16, 4, v1\nv_add_u32 v16, %d, v16" % Q_KTB)
    A("s_cmp_eq_u32 s3, 2\ns_cselect_b32 s48, 6144, 0\nv_add_u32 v115, s48, v16")
    A("s_lshr_b32 s57, s3, 1\ns_mul_i32 s48, s57, 6144\ns_add_u32 s48, s48, %d\nv_lshlrev_b32 v17, 4, v1\nv_add_u32 v17, s48, v17" % Q_QTB)
    A("s_lshr_b32 s54, s41, 2\ns_lshl_b32 s48, s40, 1\ns_add_u32 s54, s54, s48\ns_and_b32 s55, s41, 1\ns_bfe_u32 s56, s41, 0x10001")
    A("s_mul_i32 s48, s54, 3072\ns_and_b32 s51, s41, 3\ns_lshl_b32 s51, s51, 2")
    A("s_lshl_b32 s49, s56, 10\ns_add_u32 s49, s49, s48\ns_lshl_b32 s50, s55, 9\ns_add_u32 s49, s49, s50\ns_lshl_b32 s50, s57, 2\ns_add_u32 s49, s49, s50\ns_add_u32 s49, s49, 0x%x" % PM)
    bits(A, 18, [(0, 4), (1, 6), (2, 7), (5, 8), (4, 3)], t=22)
    A("v_add_u32 v18, s49, v18\ns_add_u32 s49, s48, s51\ns_add_u32 s49, s49, 0x%x" % (PM + 2048))
    bits(A, 19, [(0, 4), (1, 6), (2, 7), (4, 9)], t=22)
    A("v_add_u32 v19, s49, v19\ns_cmp_eq_u32 s3, 0\ns_cselect_b64 vcc, -1, 0\ns_cselect_b32 s49, 256, 32\ns_cselect_b32 s74, 0, 0x00ff00ff\ns_mov_b32 s75, 0x00ff00ff")
    A("v_cndmask_b32 v18, v18, v19, vcc\nv_add_u32 v118, s49, v18")
    A("s_mul_i32 s48, s54, 10240\ns_mul_i32 s49, s57, 5120\ns_add_u32 s48, s48, s49\ns_add_u32 s48, s48, 0x%x" % PT)
    A("s_lshl_b32 s49, s51, 8\ns_add_u32 s49, s49, s48\nv_lshlrev_b32 v19, 4, v1\nv_add_u32 v19, s49, v19")
    A("s_add_u32 s49, s48, s51\ns_add_u32 s49, s49, 4096\nv_bfe_u32 v22, v1, 4, 1\nv_lshlrev_b32 v112, 4, v20\nv_lshl_add_u32 v112, v22, 9, v112\nv_add_u32 v112, s49, v112")
    A("v_lshlrev_b32 v21, 2, v21")
    for r in range(4):
        A("v_add_u32 v22, %d, v21\nv_cmp_le_u32 s[%d:%d], v22, v20" % (r, 24 + 2 * r, 25 + 2 * r))
    A("s_nop 1\ns_cmp_eq_u32 s3, 3")
    for r in range(4):
        A("s_cselect_b64 s[%d:%d], s[%d:%d], 0\ns_cselect_b64 s[%d:%d], -1, s[%d:%d]" % (32 + 2 * r, 33 + 2 * r, 24 + 2 * r, 25 + 2 * r, 24 + 2 * r, 25 + 2 * r, 24 + 2 * r, 25 + 2 * r))
    A("s_mov_b32 s70, 0x%08x\ns_mov_b32 s71, s70\ns_mov_b32 s72, 0\ns_mov_b32 s73, -1\nv_mov_b32 v120, 0xff800000\nv_mov_b32 v121, 0x7fff7fff\nv_mov_b32 v126, 0x7fffffff" % SCALE_L2E)
    A("s_mov_b64 s[84:85], 0")
    A("s_lshl_b32 s48, s42, 8\ns_add_u32 s48, s48, 0x%x\nv_lshlrev_b32 v122, 2, v1\nv_add_u32 v122, s48, v122\nv_add_u32 v123, 0x2000, v122" % FL_K)
    mema_fill(A, Q_MEMA, 24)
    A("v_mov_b32 v24, 0\nv_mov_b32 v25, 0\ns_cmp_eq_u32 s3, 3\ns_cbranch_scc1 QK_noex\nds_write_b64 v114, v[24:25]")
    A.label("QK_noex")
    handshake_recv(A)
    pstamp(A, 2)
    mem_base(A)
    A("s_mov_b32 s68, 0x80008000\ns_mov_b32 s69, 0x80008000\ns_mov_b64 s[62:63], s[4:5]")
    kq_wait = mask_wait(A, [(122, 0), (123, 0)])
    def kq_base(ssg, base, dst):
        A("s_lshl_b32 s48, %s, 5\ns_add_u32 s48, s48, s42\ns_mul_i32 s48, s48, 12288\ns_add_u32 s48, s48, 0x%x" % (ssg, base))
        A("s_add_u32 s%d, s4, s48\ns_addc_u32 s%d, s5, 0" % (dst, dst + 1))
    def kq_ops(sb, ldssg):
        o = ["s_add_u32 m0, s86, %s" % ldssg]
        for i in range(3): o += ["global_load_lds_dwordx4 v124, s[%d:%d] offset:%d sc1" % (sb, sb + 1, i * 1024), None, None, None]
        return o
    AR, ACC, STG, KP = 24, 40, 64, 88
    def stage_rd(key):
        p, qq = key
        a = 8 + p if qq < 2 else 11 + p
        return ["ds_read_b64_tr_b16 %s, v%d offset:%d" % (vr(STG + p * 8 + hf * 4 + tau * 2, 2), a, ((2 * qq + hf) % 4) * 12288 + tau * 6144) for hf in range(2) for tau in range(2)]
    A("s_mul_i32 s86, s3, 3072\nv_lshlrev_b32 v124, 4, v1\nv_add_u32 v124, s86, v124")
    A("s_waitcnt vmcnt(0) lgkmcnt(0)\ns_barrier")
    A("s_mov_b32 s47, 1\ns_mov_b32 s87, %d\ns_mov_b32 s88, %d\ns_mov_b32 s89, %d" % (Q_KTB, Q_KTB + 12288, Q_QTB))
    def kq_now(ssg, ldssg):
        kq_wait(ssg); kq_base(ssg, KT, 50)
        for l in kq_ops(50, ldssg): A((l or "s_nop 0") + ("\ns_nop 0" if l and "m0" in l else ""))
        A("s_waitcnt vmcnt(0)")
    def kq_prep():
        A("s_add_u32 s47, s44, 1\ns_min_u32 s47, s47, %d\ns_bitcmp1_b64 s[84:85], s47\ns_cselect_b32 s65, 1, 0\ns_cselect_b32 s47, s47, s44" % (nsteps - 1))
        kq_base("s47", KT, 96); kq_base("s44", QT, 98)
    kq_now("s44", "s87")
    pstamp(A, 3, True)
    A("s_barrier")
    kq_prep()
    A.label("QK_step")
    for k in range(6): A("ds_read_b128 %s, v115 offset:%d" % (vr(KP + 4 * k, 4), k * 1024))
    for r in range(24): A("v_mov_b32 v%d, 0" % (ACC + r))
    for p in range(3):
        for l in stage_rd((p, 0)): A(l)
    A("s_add_u32 s48, s45, s67\ns_add_u32 m0, s48, %d\ns_and_b32 s64, s68, 0x80000000" % Q_MEMA)
    stamp(A, 0)
    mem_poll(A, "QK", 4, (6, 7, 127), 116, TUNE["qthr"], vl=2)
    stamp(A, 1); stamp(A, 0, 1)
    A.lds_q = []
    order = [0, 6, 1, 2, 7, 3, 4, 8, 5, 9]
    slot = {q: i % 4 for i, q in enumerate(order)}
    def a_rd(q, h): A.lds("ds_read_b64_tr_b16 %s, v%d offset:%d" % (vr(AR + 4 * slot[q] + 2 * h, 2), (5, 119)[h], q * 1024), ("A", q, h))
    steps = []
    for q in order:
        t = []
        for p in range(3):
            t.append((ACC + 8 * p + 4, ("R", blk[(3 + p, q)])))
            t.append((ACC + 8 * p, ("R", blk[(p, q)]) if q < 6 else ("L", (p, q - 6), STG + 8 * p, (p, q - 5) if q < 9 else None)))
        steps.append((q, t))
    F = Filler()
    F.add([None, None] + kq_ops(98, "s89") + kq_ops(96, "s88"))
    smf_stream(A, steps, a_rd, lambda q: AR + 4 * slot[q], F, stage_rd)
    F.flush(A)
    stamp(A, 1, 1)
    A("s_nop 2")
    nan_check(A, ool, "QK", ACC + 4, 125, 64, "QK_step")
    for p in range(3):
        d = 20 + 2 * (p & 1)
        o1 = half_sum_ops(ACC + 8 * p + 4, d + 1); o0 = half_sum_ops(ACC + 8 * p, d)
        A("\n".join([o1[0], o0[0], o1[1], o0[1]]))
        A("ds_write2_b32 v14, v%d, v%d offset0:%d offset1:%d" % (d, d + 1, p * 128 if p < 2 else 0, p * 128 + 4 if p < 2 else 4) if p < 2 else "ds_write2_b32 v117, v%d, v%d offset1:4" % (d, d + 1))
    for r in range(4): A("v_cndmask_b32 v%d, v120, 0, s[72:73]" % (84 + r))
    stamp(A, 2); stamp(A, 2, 1)
    A("s_waitcnt vmcnt(0) lgkmcnt(0)\ns_barrier")
    stamp(A, 3); stamp(A, 3, 1)
    XO = [24, 28, 32, 36, 64, 68]
    def x_rd(k):
        A.lds("ds_read_b64_tr_b16 %s, v15 offset:%d" % (vr(XO[k], 2), k * 1024), ("X", k, 0))
        A.lds("ds_read_b64_tr_b16 %s, v15 offset:%d" % (vr(XO[k] + 2, 2), k * 1024 + 512), ("X", k, 1))
    A("s_cmp_eq_u32 s3, 3\ns_cbranch_scc1 QK_wT")
    A.lds_q = []
    for k in range(6): x_rd(k)
    S = 72
    A("s_cmp_eq_u32 s3, 0\ns_cbranch_scc1 QK_w0")
    q0 = list(A.lds_q)
    for w0 in (False, True):
        if w0: A.label("QK_w0")
        A.lds_q = list(q0)
        for k in range(6):
            A.need_lds(("X", k, 1))
            A("v_mfma_f32_16x16x32_bf16 %s, %s, %s, %s" % (vr(S, 4), vr(XO[k] if w0 else KP + 4 * k, 4), vr(XO[k], 4), (vr(84, 4) if w0 else "0") if k == 0 else vr(S, 4)))
        if w0: A("s_nop 7")
        else: A("s_nop 6\ns_branch QK_sm")
    A.label("QK_sm")
    A("v_max3_f32 v20, v72, v73, v74\nv_max_f32 v20, v20, v75")
    xsum_g(A, "v20", "v21", "v_max_f32")
    A("v_mul_f32 v20, s70, v20")
    for r in (0, 2): A("v_pk_fma_f32 v[%d:%d], v[%d:%d], s[70:71], v[20:21] op_sel_hi:[1,0,0] neg_lo:[0,0,1] neg_hi:[0,0,1]" % (S + r, S + r + 1, S + r, S + r + 1))
    for r in range(4): A("v_exp_f32 v%d, v%d" % (S + r, S + r))
    A("s_nop 0\nv_pk_add_f32 v[22:23], v[72:73], v[74:75]\nv_add_f32 v21, v22, v23")
    xsum_g(A, "v21", "v22")
    A("v_bfi_b32 v21, v126, v21, s64\nds_write_b64 v114, v[20:21]")
    stamp(A, 4, 1)
    def ex_rd(b): A("ds_read2_b64 v[%d:%d], v113 offset1:64\nds_read_b64 v[%d:%d], v113 offset:1024" % (b, b + 3, b + 4, b + 5))
    def ex_ck(b, L):
        A("s_waitcnt lgkmcnt(2)\nv_bitop3_b32 v22, v%d, v%d, s64 bitop3:0x7e\nv_bitop3_b32 v22, v22, v%d, s64 bitop3:0xf6\nv_max3_f32 v23, v%d, v%d, v%d" % (b + 1, b + 3, b + 5, b, b + 2, b + 4))
        A("v_cmp_gt_i32 vcc, 0, v22\ns_cbranch_vccz %s" % L)
    def ex_fin(b):
        A("v_sub_f32 v24, v%d, v23\nv_sub_f32 v25, v%d, v23\nv_sub_f32 v26, v%d, v23\nv_sub_f32 v20, v20, v23" % (b, b + 2, b + 4))
        A("v_exp_f32 v24, v24\nv_exp_f32 v25, v25\nv_exp_f32 v26, v26\nv_exp_f32 v20, v20")
        A("v_mul_f32 v22, v24, abs(v%d)\nv_fma_f32 v22, v25, abs(v%d), v22\nv_fma_f32 v22, v26, abs(v%d), v22" % (b + 1, b + 3, b + 5))
    ex_rd(76); A("s_nop 3")
    A.label("QK_ex")
    ex_rd(82); ex_ck(76, "QK_exa")
    ex_rd(76); ex_ck(82, "QK_exb")
    A("s_waitcnt lgkmcnt(0)")
    spin_guard(A, "QK_ex")
    A.label("QK_exb")
    ex_fin(82); A("s_branch QK_exd")
    A.label("QK_exa")
    ex_fin(76)
    A.label("QK_exd")
    A("v_rcp_f32 v22, v22\ns_nop 0\nv_mul_f32 v20, v20, v22")
    for r in (0, 2): A("v_pk_mul_f32 v[%d:%d], v[%d:%d], v[20:21] op_sel_hi:[1,0]" % (S + r, S + r + 1, S + r, S + r + 1))
    A("v_cvt_pk_bf16_f32 v24, v72, v73\nv_cvt_pk_bf16_f32 v25, v74, v75\nv_and_or_b32 v24, v24, v121, s68\nv_and_or_b32 v25, v25, v121, s68")
    local_store(A, ool, ["s_mov_b64 exec, s[74:75]", "global_store_dword v18, v24, s[4:5]", "global_store_dword v118, v25, s[4:5]", "s_mov_b64 exec, -1"])
    stamp(A, 4); stamp(A, 5, 1)
    A("s_cmp_eq_u32 s3, 1\ns_cbranch_scc1 QK_wT1\ns_cmp_eq_u32 s3, 2\ns_cbranch_scc1 QK_join")
    mema_reset(A, 125, 20)
    A("s_branch QK_join")
    A.label("QK_wT")
    A("s_sleep 3")
    A.label("QK_wT1")
    A.lds_q = []
    KOP = [40 + 4 * n for n in range(6)] + [72, 76, 80, 88, 92, 20]
    S0, S1, S2, QO = 96, 100, 104, 108
    def rq(k): A.lds("ds_read_b128 %s, v17 offset:%d" % (vr(QO if k % 2 == 0 else 84, 4), k * 1024), ("Q", k))
    def kt_read(n): A.lds("ds_read_b128 %s, v16 offset:%d" % (vr(KOP[n], 4), (n & 1) * 6144 + (n >> 1) * 1024), ("K", n))
    rq(0); x_rd(0); kt_read(0); kt_read(1); rq(1)
    for k in range(1, 6): x_rd(k); kt_read(2 * k); kt_read(2 * k + 1)
    for k in range(6):
        b = vr(QO if k % 2 == 0 else 84, 4)
        A.need_lds(("Q", k)); A.need_lds(("K", 2 * k + 1))
        for Sx, a in ((S1, KOP[2 * k]), (S2, KOP[2 * k + 1]), (S0, XO[k])):
            A("v_mfma_f32_16x16x32_bf16 %s, %s, %s, %s" % (vr(Sx, 4), vr(a, 4), b, "0" if k == 0 else vr(Sx, 4)))
        if k + 2 < 6: rq(k + 2)
    A("s_nop 5")
    for r in range(4): A("v_cndmask_b32 v%d, v120, v%d, s[%d:%d]" % (S1 + r, S1 + r, 24 + 2 * r, 25 + 2 * r))
    for r in range(4): A("v_cndmask_b32 v%d, v120, v%d, s[%d:%d]" % (S2 + r, S2 + r, 32 + 2 * r, 33 + 2 * r))
    for r in range(4): A("v_cndmask_b32 v%d, v120, v%d, s[72:73]" % (S0 + r, S0 + r))
    A("v_max3_f32 v20, v96, v97, v98\nv_max3_f32 v21, v99, v100, v101\nv_max3_f32 v20, v20, v102, v103\nv_max3_f32 v21, v21, v104, v105\nv_max3_f32 v20, v20, v106, v107\nv_max_f32 v20, v20, v21")
    xsum_g(A, "v20", "v21", "v_max_f32")
    A("v_mul_f32 v20, s70, v20")
    for r in range(0, 12, 2): A("v_pk_fma_f32 v[%d:%d], v[%d:%d], s[70:71], v[20:21] op_sel_hi:[1,0,0] neg_lo:[0,0,1] neg_hi:[0,0,1]" % (96 + r, 97 + r, 96 + r, 97 + r))
    for r in range(12): A("v_exp_f32 v%d, v%d" % (96 + r, 96 + r))
    A("v_pk_add_f32 v[20:21], v[96:97], v[98:99]\nv_pk_add_f32 v[22:23], v[100:101], v[102:103]\nv_pk_add_f32 v[20:21], v[20:21], v[104:105]\nv_pk_add_f32 v[22:23], v[22:23], v[106:107]")
    A("v_pk_add_f32 v[20:21], v[20:21], v[22:23]\nv_add_f32 v20, v20, v21")
    xsum_g(A, "v20", "v21")
    A("v_rcp_f32 v20, v20\ns_nop 0")
    for r in range(0, 12, 2): A("v_pk_mul_f32 v[%d:%d], v[%d:%d], v[20:21] op_sel_hi:[1,0]" % (96 + r, 97 + r, 96 + r, 97 + r))
    order2 = [(76, 100), (77, 102), (78, 104), (79, 106), (80, 96), (81, 98)]
    for d, s_ in order2: A("v_cvt_pk_bf16_f32 v%d, v%d, v%d" % (d, s_, s_ + 1))
    for d, s_ in order2: A("v_and_or_b32 v%d, v%d, v121, s69" % (d, d))
    local_store(A, ool, ["global_store_dwordx4 v19, v[76:79], s[62:63]", "s_mov_b64 exec, s[72:73]", "global_store_dword v112, v80, s[62:63]", "global_store_dword v112, v81, s[62:63] offset:256", "s_mov_b64 exec, -1"])
    A.label("QK_join")
    A("s_waitcnt lgkmcnt(0)\ns_barrier")
    stamp(A, 5)
    stamp_out(A, 20)
    A("s_add_u32 s44, s44, 1\ns_cmp_ge_u32 s44, %d\ns_cbranch_scc1 QK_done" % nsteps)
    A("s_cmp_eq_u32 s65, 0\ns_cbranch_scc1 QK_late")
    A.label("QK_latec")
    A("s_barrier")
    B = A.l; A.l = []
    A.label("QK_late"); kq_now("s44", "s88"); A("s_branch QK_latec")
    ool.b.append("\n".join(A.l)); A.l = B
    kq_prep()
    A("s_sub_u32 s48, s88, s87\ns_mov_b32 s49, s87\ns_mov_b32 s87, s88\ns_mov_b32 s88, s49\nv_add_u32 v16, s48, v16\nv_add_u32 v115, s48, v115")
    A("s_xor_b32 s68, s68, 0x80008000")
    A("s_and_b32 s48, s44, 3\ns_cmp_eq_u32 s48, 0\ns_cselect_b32 s49, 0x80008000, 0\ns_xor_b32 s69, s69, s49")
    A("s_mul_i32 s48, s48, 81920\ns_add_u32 s62, s4, s48\ns_addc_u32 s63, s5, 0")
    step_advance(A, (5, 119, 6, 7, 125, 127))
    if TUNE["sl_q"]: A("s_sleep %d" % TUNE["sl_q"])
    A("s_branch QK_step")
    A.label("QK_done")
    A("s_endpgm")

V_WRES, V_MEMA, V_VB = 90112, 0, 20480
def role_vo(A, ool, nsteps=64):
    A.c("==== role VO : s40=x s41=idx")
    pstamp(A, 0)
    A("s_load_dwordx4 s[8:11], s[0:1], %d" % K_WV)
    handshake_send(A)
    A("s_lshl_b32 s42, s40, 3\ns_add_u32 s42, s42, s41")
    dma_src_regs(A, 384, 12288, 24, t0=20)
    dma_src_regs(A, 1280, 1280, 28, t0=20)
    A("s_mov_b32 s91, 384\ns_mul_i32 s56, s3, 3")
    for i in range(3):
        tr_addr_reg(A, 384, "s56", 8 + i, t0=20); A("s_add_u32 s56, s56, 1")
    A("s_mov_b32 s91, 1280\ns_mul_i32 s56, s3, 10")
    for i in range(10):
        tr_addr_reg(A, 1280, "s56", 40 + i, t0=20); A("s_add_u32 s56, s56, 1")
    A("s_mul_i32 s48, s42, 384\ns_add_u32 s8, s8, s48\ns_addc_u32 s9, s9, 0\ns_add_u32 s12, s8, %d\ns_addc_u32 s13, s9, 0" % (14 * 32 * 12288))
    A("s_mul_i32 s48, s42, 245760\ns_add_u32 s10, s10, s48\ns_addc_u32 s11, s11, 0")
    vreg = lambda t, q: 104 + (t * 7 + q) * 8
    oreg = lambda t, q: 272 + (t * 3 + q) * 8
    oslot = [0, 40960, 81920, 122880, 0, 40960]
    ch = [dict(SEG=1280, sb=10, step=40960, dests=[(t, oreg(t, kk >> 1) + 4 * (kk & 1)) for t in range(10)], slot=oslot[kk], srcv=28, trv=40) for kk in range(6)]
    ch += [dict(SEG=384, sb=12, step=32 * 12288, dests=None, slot=V_WRES + i * 12288, srcv=24, trv=8) for i in range(6)]
    ch += [dict(SEG=384, sb=8, step=32 * 12288, dests=[(t, vreg(t, kk >> 1) + 4 * (kk & 1)) for t in range(3)], slot=(kk % 7) * 12288, srcv=24, trv=8) for kk in range(14)]
    A.vm_q = []; A.lds_q = []
    load_weights2(A, ch, 52)
    pstamp(A, 1)
    for i in range(3): A("v_add_u32 v%d, %d, v%d\nv_add_u32 v%d, 49152, v%d" % (8 + i, V_WRES, 8 + i, 11 + i, 8 + i))
    mem_setup(A, V_MEMA, 4, 5, 14, (6, 7, 18))
    A("v_lshlrev_b32 v15, 4, v1")
    bits(A, 19, [(4, 6), (5, 7), (3, 5), (2, 4), (0, 3), (1, 2)])
    A("s_mul_i32 s48, s3, 768\ns_add_u32 s48, s48, %d\nv_add_u32 v19, s48, v19\ns_and_b32 s48, s3, 1\ns_lshl_b32 s48, s48, 4\nv_xor_b32 v19, s48, v19\nv_xor_b32 v16, 16, v19" % V_VB)
    A("s_mul_i32 s48, s40, 81920\ns_mul_i32 s49, s3, 20480\ns_add_u32 s48, s48, s49\ns_lshl_b32 s49, s41, 9\ns_add_u32 s80, s48, s49\ns_add_u32 s80, s80, 0x%x" % (YB + 4096))
    A("v_lshlrev_b32 v17, 3, v1\ns_mov_b32 s78, 0xfffefffe")
    mema_fill(A, V_MEMA, 24)
    handshake_recv(A)
    pstamp(A, 2)
    mem_base(A)
    A("s_waitcnt vmcnt(0) lgkmcnt(0)\ns_barrier")
    pstamp(A, 3, True)
    AR, VA, OA, STG = 24, 68, 40, 80
    def stage_rd(key):
        t, qq = key
        return ["ds_read_b64_tr_b16 %s, v%d offset:%d" % (vr(STG + t * 8 + hf * 4 + tau * 2, 2), 8 + t if qq < 2 else 11 + t, ((2 * qq + hf) % 4) * 12288 + tau * 6144) for hf in range(2) for tau in range(2)]
    A.label("VO_step")
    for r in range(40): A("v_mov_b32 v%d, 0" % (OA + r))
    for t in range(3):
        for l in stage_rd((t, 0)): A(l)
    A("s_lshl_b32 s48, s45, 5\ns_add_u32 s48, s48, s80")
    for k in range(3): A("s_add_u32 s%d, s4, s48\ns_addc_u32 s%d, s5, 0\ns_add_u32 s48, s48, 8192" % (24 + 2 * k, 25 + 2 * k))
    A("s_sub_u32 s81, %d, s45\ns_add_u32 s48, s45, s67\ns_add_u32 m0, s48, %d\ns_nop 0" % (V_VB - V_MEMA, V_MEMA))
    mem_poll(A, "VO", 4, (6, 7, 18), 23, TUNE["qthr"], vl=2)
    stamp(A, 0)
    A.lds_q = []
    order = [0, 1, 7, 2, 3, 8, 4, 5, 6, 9]
    slot = {q: i % 4 for i, q in enumerate(order)}
    def a_rd(q, h): A.lds("ds_read_b64_tr_b16 %s, v%d offset:%d" % (vr(AR + 4 * slot[q] + 2 * h, 2), (5, 14)[h], q * 1024), ("A", q, h))
    F = Filler()
    smf_stream(A, [(q, [(VA + 4 * t, ("R", vreg(t, q)) if q < 7 else ("L", (t, q - 7), STG + 8 * t, (t, q - 6) if q < 9 else None)) for t in range(3)]) for q in order],
               a_rd, lambda q: AR + 4 * slot[q], F, stage_rd, burst=True)
    A("v_add_u32 v80, s81, v5\nv_add_u32 v81, s81, v14\ns_nop 3")
    nan_check(A, ool, "VO", VA, 15, 24, "VO_step")
    for t in range(3):
        for l in half_sum_ops(VA + 4 * t, 20 + t): A(l)
        A("ds_write_b32 v%d, v%d offset:%d" % ((19, 16, 19)[t], 20 + t, t * 256))
    for r in range(12): A("v_mov_b32 v%d, 0" % (VA + r))
    A("s_waitcnt vmcnt(0) lgkmcnt(0)\ns_barrier")
    stamp(A, 1)
    for slow in (False, True):
        if slow: B = A.l; A.l = []; A.label("VO_slow")
        else: A("s_cmp_eq_u32 s43, 0\ns_cbranch_scc1 VO_slow")
        A.lds_q = []
        def a2_rd(q, h): A.lds("ds_read_b64_tr_b16 %s, v%d offset:%d" % (vr(AR + 4 * q + 2 * h, 2), (80, 81)[h], q * 1024), ("A", q, h))
        F = Filler()
        def yops(t):
            d = 20 + t % 4
            a_ = OA + 4 * t
            o = ["v_add_f32 v%d, v%d, v%d" % (a_, a_, a_ + 2), "v_add_f32 v%d, v%d, v%d" % (a_ + 1, a_ + 1, a_ + 3), "v_cvt_pk_bf16_f32 v%d, v%d, v%d" % (d, a_, a_ + 1), "v_pk_min_u16 v%d, s78, v%d" % (d, d)]
            if t & 1: o += ["global_store_dwordx2 v17, v[%d:%d], s[%d:%d] offset:%d%s" % (d - 1, d, 24 + 2 * (t // 4), 25 + 2 * (t // 4), ((t >> 1) & 1) * 4096 - 4096, " sc1" if slow else "")]
            return o
        steps = [(q, [(OA + 4 * t, ("R", oreg(t, q)))]) for t in range(10) for q in range(3)]
        F.add([None] * 7 + ["s_nop 0", None, "s_nop 0", None])
        for t in range(7):
            y = yops(t); F.add([y[0], None, y[1], y[2], None, y[3]] + ([y[4]] if t & 1 else []) + [None])
        smf_stream(A, steps, a2_rd, lambda q: AR + 4 * q, F, None, per_gap=3)
        F.flush(A)
        for t in range(7, 10):
            if t == 9: A("s_nop 0")
            for l in yops(t): A(l)
        if slow: A("s_branch VO_cont"); ool.b.append("\n".join(A.l)); A.l = B
        else: A.label("VO_cont")
    stamp(A, 2)
    Lr = A.newlabel("VR")
    A("s_cmp_lg_u32 s3, 0\ns_cbranch_scc1 %s" % Lr)
    mema_reset(A, 15, 20)
    A.label(Lr)
    A("s_waitcnt lgkmcnt(0)\ns_barrier")
    stamp_out(A, 20)
    A("s_add_u32 s44, s44, 1\ns_cmp_ge_u32 s44, %d\ns_cbranch_scc1 VO_done" % nsteps)
    step_advance(A, (5, 14, 6, 7, 18, 15))
    if TUNE["sl_v"]: A("s_sleep %d" % TUNE["sl_v"])
    A("s_branch VO_step")
    A.label("VO_done")
    A("s_endpgm")

XRING = 491520
C_PL, C_YL = 81920, 88064
def role_cmb(A, ool, nsteps=64):
    A.c("==== role CMB : s40=x s41=j ; wave: hh = w&1, tiles own = 4j+w, other = own^1")
    C_YL, C_SX, C_TX = 81920, 90112, 94208
    handshake_send(A)
    if bulk.MERGED:
        A("v_mov_b32 v20, 36")
        A.label("CB_cw")
        A("global_load_dword v21, v20, s[6:7] sc1\ns_waitcnt vmcnt(0)\nv_readfirstlane_b32 s57, v21\ns_lshr_b32 s48, s57, 16\ns_cmp_eq_u32 s48, 96\ns_cbranch_scc1 CB_cd\ns_sleep 4")
        spin_guard(A, "CB_cw")
        A.label("CB_cd")
        A("s_and_b32 s57, s57, 0xffff\ns_cmp_gt_u32 s57, 96\ns_cselect_b32 s57, 8192, 0")
    else: A("s_mov_b32 s57, 0x%x\ns_load_dword s57, s[4:5], s57" % CALW)
    A("s_lshl_b32 s42, s41, 2\ns_add_u32 s42, s42, s3\ns_and_b32 s55, s3, 1\ns_lshl_b32 s56, s40, 1\ns_add_u32 s56, s56, s55\nv_lshlrev_b32 v9, 4, v1\nv_lshlrev_b32 v8, 3, v1")
    idx_reg(A)
    A("s_mul_i32 s48, s56, 3072\ns_add_u32 s48, s48, 0x%x\nv_add_u32 v10, s48, v9" % PM)
    A("s_mul_i32 s87, s55, 10240\nv_add_u32 v11, s87, v9\ns_lshr_b32 s48, s3, 1\ns_mul_i32 s48, s48, 5120\ns_add_u32 s87, s87, s48")
    A("s_mul_i32 s48, s40, 20480\ns_add_u32 s48, s48, s87\ns_add_u32 s48, s48, 0x%x\nv_add_u32 v18, s48, v9\nv_add_u32 v4, 4096, v18" % PT)
    A("s_mul_i32 s48, s40, 2621440\ns_lshl_b32 s49, s42, 9\ns_add_u32 s48, s48, s49\ns_add_u32 s48, s48, 0x%x\nv_add_u32 v19, s48, v8\nv_add_u32 v5, 20480, v19" % OP)
    A("s_mul_i32 s48, s40, 81920\ns_lshl_b32 s49, s42, 11\ns_add_u32 s48, s48, s49\ns_add_u32 s48, s48, 0x%x\nv_add_u32 v6, s48, v9" % YB)
    A("s_lshl_b32 s91, s3, 11\ns_add_u32 s91, s91, %d\nv_add_u32 v243, s91, v9\ns_lshl_b32 s48, s55, 2\ns_add_u32 s48, s48, s91\nv_add_u32 v241, s48, v8\nv_xor_b32 v244, 4, v241" % C_YL)
    A("s_lshl_b32 s48, s3, 9\ns_add_u32 s48, s48, %d\nv_add_u32 v245, s48, v8\nv_xor_b32 v246, 512, v245" % C_SX)
    A("s_lshl_b32 s48, s3, 11\ns_add_u32 s48, s48, %d\nv_add_u32 v247, s48, v9\nv_xor_b32 v248, 2048, v247" % C_TX)
    A("s_waitcnt lgkmcnt(0)")
    xr_base(A, "s58", "s4")
    A("s_add_u32 s58, s58, s57")
    def smap(sg): A("s_lshr_b32 s51, %s, 13\ns_lshl_b32 s51, s51, 13\ns_add_u32 %s, %s, s51\ns_add_u32 %s, %s, s58" % (sg, sg, sg, sg, sg))
    for k in range(1, 4):
        A("s_add_u32 s48, s40, %d\ns_and_b32 s48, s48, 3\ns_mul_i32 s48, s48, 40\ns_add_u32 s48, s48, s42\ns_mul_i32 s48, s48, 1536\ns_add_u32 s48, s48, %d" % (k, (k - 1) * 512))
        smap("s48"); A("v_add_u32 v%d, s48, v8" % (11 + k))
        A("s_mul_i32 s48, s40, 40\ns_add_u32 s48, s48, s42\ns_mul_i32 s48, s48, 1536\ns_add_u32 s48, s48, %d" % ((k - 1) * 512))
        smap("s48"); A("v_add_u32 v%d, s48, v8" % (14 + k))
    bits(A, 7, [(4, 6), (5, 7), (3, 5), (2, 4), (0, 3), (1, 2)])
    A("s_lshl_b32 s49, s55, 4\nv_xor_b32 v7, s49, v7\ns_lshl_b32 s48, s42, 8\nv_add_u32 v7, s48, v7")
    A("s_mov_b32 s74, 0x33333333\ns_mov_b32 s75, 0x33333333\ns_mov_b32 s78, 0xfffefffe\ns_mov_b32 s79, 0x80008000")
    POOL, PR, PA, RS, USTG, XG, DA, SENT, TX = 24, 64, 76, 96, 176, 212, 218, 228, 56
    for r in range(12): A("v_mov_b32 v%d, 0" % (PR + r))
    for r in range(4): A("v_mov_b32 v%d, -1" % (SENT + r))
    A("v_lshlrev_b32 v20, 4, v0\nv_add_u32 v21, 49152, v20")
    for i in range(12): A("ds_write_b128 v20, %s offset:%d\nds_write_b128 v21, %s offset:%d" % (vr(PR, 4), i * 4096, vr(PR, 4), i * 4096))
    A("ds_write_b128 v21, %s offset:49152" % vr(PR, 4))
    A("s_lshl_b32 s48, s56, 2\ns_mul_i32 s49, s48, 40960\ns_lshl_b32 s50, s42, 10\ns_add_u32 s49, s49, s50\ns_add_u32 s49, s49, 0x%x\nv_add_u32 v232, s49, v9" % UT)
    for i in range(1, 4): A("v_add_u32 v%d, 40960, v%d" % (232 + i, 231 + i))
    for i in range(4): A("v_xor_b32 v%d, 1024, v%d" % (236 + i, 232 + i))
    A("s_lshl_b32 s48, s48, 8\ns_add_u32 s48, s48, 0x%x\nv_lshlrev_b32 v240, 2, v1\nv_add_u32 v240, s48, v240\ns_mov_b64 s[84:85], 0" % FL_U)
    handshake_recv(A)
    A("s_waitcnt lgkmcnt(0)\ns_barrier")
    uwait = mask_wait(A, [(240, 256 * i) for i in range(4)])
    ureg = lambda rs, i: rs + (i >> 2) * 20 + (i & 3) * 4
    def u_load(ssg, dst, wait=True):
        if wait: uwait(ssg)
        A("s_mul_i32 s48, %s, %d\ns_add_u32 s50, s4, s48\ns_addc_u32 s51, s5, 0" % (ssg, 32 * 40960))
        for i in range(8): A("global_load_dwordx4 %s, v%d, s[50:51] sc1" % (vr(dst(i), 4), 232 + i))
    mem_base(A)
    A("s_mov_b32 s53, -1\ns_lshl_b32 s52, s40, 6\ns_add_u32 s52, s52, s42\ns_lshl_b32 s52, s52, 2\ns_add_u32 s52, s52, 0x%x" % FL_O)
    u_load("s44", lambda i: ureg(RS, i))
    A("s_add_u32 s64, s4, %d\ns_addc_u32 s65, s5, 0\ns_add_u32 s82, s4, 327680\ns_addc_u32 s83, s5, 0" % XRING)
    def pt_setup(ssg):
        A("s_mov_b32 s46, %s\ns_and_b32 s48, s46, 3\ns_mul_i32 s49, s48, 81920\ns_add_u32 s62, s4, s49\ns_addc_u32 s63, s5, 0" % ssg)
        A("s_mul_i32 s48, s48, 20480\ns_add_u32 s89, s48, s87\nv_add_u32 v242, s48, v11")
        A("s_bitcmp1_b32 s46, 2\ns_cselect_b32 s69, 0, 0x80008000\ns_cselect_b32 s71, 1.0, -1.0\ns_and_b32 s90, s46, 1\ns_xor_b32 s90, s90, 1")
    def pt_issue_ops():
        return (["s_mov_b32 m0, s89", "s_nop 0"] + ["global_load_lds_dwordx4 v18, s[62:63] offset:%d sc1" % (n * 1024) for n in range(4)]
                + ["s_add_u32 m0, s89, 4096", "s_nop 0", "global_load_lds_dwordx4 v4, s[62:63] sc1"])
    def pr(tag, rs, issued, wait=None, thru=False):
        L = tag + "_pt"; Lg = tag + "_ptg"; L1 = tag + "_pt1"
        if issued: A("s_branch %s" % L1)
        A.label(L)
        for l in pt_issue_ops(): A(l)
        A("s_waitcnt vmcnt(0)")
        A.label(L1)
        A.lds_q = []
        A("v_mov_b32 v20, 0\nv_mov_b32 v21, 0")
        for n in range(8): A.lds("ds_read_b128 %s, v242 offset:%d" % (vr(POOL + 4 * n, 4), n * 1024), ("T", n))
        for n in range(10):
            qt, ks = n // 5, n % 5
            A.need_lds(("T", n)); b = POOL + 4 * (n % 8)
            for tl in (1, 0):
                acc = vr(PA + 8 * tl + 4 * qt, 4)
                A("v_mfma_f32_16x16x32_bf16 %s, %s, %s, %s" % (acc, vr(rs + 20 * tl + 4 * ks, 4), vr(b, 4), "0" if ks == 0 else acc))
                if tl: A("v_bitop3_b32 v22, v%d, v%d, s69 bitop3:0x7e\nv_bitop3_b32 v23, v%d, v%d, s69 bitop3:0x7e" % (b, b + 1, b + 2, b + 3))
                else: A("v_or3_b32 v%d, v%d, v22, v23" % (20 + n % 2, 20 + n % 2))
            if n < 2: A.lds("ds_read_b128 %s, v242 offset:%d" % (vr(b, 4), (n + 8) * 1024), ("T", n + 8))
        A("v_or_b32 v20, v20, v21\nv_and_b32 v20, s79, v20\nv_cmp_ne_u32 vcc, 0, v20\ns_cbranch_vccz %s" % Lg)
        spin_guard(A, L)
        A.label(Lg)
        A("s_mul_i32 s48, s46, 40960\ns_add_u32 s50, s4, s48\ns_addc_u32 s51, s5, 0")
        for r in range(8): A("v_and_or_b32 v%d, v%d, -2, s90" % (PA + 8 + r, PA + 8 + r))
        A("ds_write_b128 v248, %s\nds_write_b128 v248, %s offset:1024" % (vr(PA + 8, 4), vr(PA + 12, 4)))
        A.label(tag + "_tx")
        A("ds_read_b128 %s, v247\nds_read_b128 %s, v247 offset:1024\ns_waitcnt lgkmcnt(0)" % (vr(TX, 4), vr(TX + 4, 4)))
        for r in range(4): A("v_bitop3_b32 v%d, v%d, v%d, s90 bitop3:0x7e" % (20 + r, TX + 2 * r, TX + 2 * r + 1))
        A("v_or3_b32 v20, v20, v21, v22\nv_or_b32 v20, v20, v23\nv_and_b32 v20, 1, v20\nv_cmp_ne_u32 vcc, 0, v20\ns_cbranch_vccz %s_txg" % tag)
        spin_guard(A, tag + "_tx")
        A.label(tag + "_txg")
        for r in range(0, 8, 2): A("v_pk_add_f32 v[%d:%d], v[%d:%d], v[%d:%d]" % (PA + r, PA + r + 1, PA + r, PA + r + 1, TX + r, TX + r + 1))
        for r in range(8): A("v_mul_f32 v%d, s71, v%d" % (PA + r, PA + r))
        for r in range(4): A("v_cvt_pk_bf16_f32 v%d, v%d, v%d" % (PA + 16 + r, PA + 2 * r, PA + 2 * r + 1))
        if wait is not None: A("s_waitcnt vmcnt(%d)" % wait)
        st = ["global_store_dwordx2 v19, v[%d:%d], s[50:51]" % (PA + 16, PA + 17), "global_store_dwordx2 v5, v[%d:%d], s[50:51]" % (PA + 18, PA + 19)]
        if thru:
            for l in st: A(l + " sc1")
        else: local_store(A, ool, st)
        A("s_mov_b32 s53, s46")
    def op_flag(sg="s53", thru=False):
        L = A.newlabel("OF")
        A("s_cmp_eq_u32 %s, -1\ns_cbranch_scc1 %s\ns_lshl_b32 s48, %s, 10" % (sg, L, sg))
        A("s_add_u32 s48, s48, s52\nv_mov_b32 v20, s48\nv_mov_b32 v21, 1\ns_mov_b64 exec, 1")
        if thru: A("global_store_dword v20, v21, s[4:5] sc1")
        else: local_store(A, ool, ["global_store_dword v20, v21, s[4:5]"])
        A("s_mov_b64 exec, -1")
        A.label(L)
    for pz in range(2):
        T = "CB%d" % pz
        Rc = RS + 40 * pz; Ro = RS + 40 * (pz ^ 1)
        A.label(T + "_top")
        A("s_sub_u32 s47, s44, 1"); pt_setup("s47")
        for l in pt_issue_ops(): A(l)
        mem_slot(A, 60, 1); mem_slot(A, 80, 3)
        Le = A.newlabel("UE")
        A("s_add_u32 s47, s44, 1\ns_min_u32 s47, s47, 63\ns_bitcmp1_b64 s[84:85], s47\ns_cselect_b32 s88, 1, 0\ns_cbranch_scc0 %s" % Le)
        u_load("s47", lambda i: USTG + 4 * i, wait=False)
        A.label(Le)
        A("s_bitcmp1_b32 s44, 1\ns_cselect_b32 s68, 0, 1\ns_xor_b32 s49, s68, 1")
        for r in range(6): A("v_mov_b32 v%d, s49" % (XG + r))
        A("s_waitcnt vmcnt(8)")
        op_flag()
        yb = "s[4:5]" if pz == 0 else "s[82:83]"
        xb = "s[4:5]" if pz == 0 else "s[64:65]"
        yr = [Rc + 16 + i for i in range(4)] + [Rc + 36 + i for i in range(4)]
        A("ds_write_b128 v243, %s\nds_write_b128 v243, %s offset:1024\ns_mov_b32 m0, s91\ns_waitcnt lgkmcnt(0)" % (vr(SENT, 4), vr(SENT, 4)))
        if TUNE["sl_y"]: A("s_sleep %d" % TUNE["sl_y"])
        def p_loads():
            A("global_load_dwordx4 %s, v10, s[4:5] sc1\nglobal_load_dwordx4 %s, v10, s[4:5] offset:1024 sc1" % (vr(PR, 4), vr(PR + 4, 4)))
            A("s_mov_b64 exec, s[74:75]\nglobal_load_dwordx4 %s, v10, s[4:5] offset:2048 sc1\ns_mov_b64 exec, -1" % vr(PR + 8, 4))
        A.label(T + "_yp")
        A("global_load_lds_dwordx4 v6, %s sc1\nglobal_load_lds_dwordx4 v6, %s offset:1024 sc1" % (yb, yb))
        if TUNE["ycomb"]: p_loads()
        for i in range(0, 8, 2): A("ds_read2st64_b32 v[%d:%d], v%d offset0:%d offset1:%d" % (yr[i], yr[i + 1], 241 if i < 4 else 244, 2 * (i & 3), 2 * (i & 3) + 2))
        A("s_waitcnt lgkmcnt(0)")
        A("v_max3_u32 v20, v%d, v%d, v%d\nv_max3_u32 v21, v%d, v%d, v%d\nv_max3_u32 v20, v20, v%d, v%d\nv_max_u32 v20, v20, v21" % tuple(yr))
        A("v_cmp_eq_u32 vcc, -1, v20\ns_cbranch_vccz %s_yg\ns_sleep %d\ns_waitcnt vmcnt(%d)" % (T, TUNE["ysl"], TUNE["ythr"]))
        spin_guard(A, T + "_yp")
        L = T + "_pp"; Lg = T + "_pg"; Lfin = T + "_fin"
        A.label(T + "_yg")
        stamp(A, 0); stamp(A, 1)
        A("s_cmp_eq_u32 s44, %d\ns_cbranch_scc1 %s" % (nsteps - 1, Lfin))
        A.label(L)
        p_loads(); A("s_waitcnt vmcnt(%d)" % TUNE["pthr"])
        A.label(T + "_pc")
        b3 = "0x80" if pz == 0 else "0xfe"; op2 = "v_and_b32" if pz == 0 else "v_or_b32"
        B3 = lambda d, a, b, c: "v_bitop3_b32 v%d, v%d, v%d, v%d bitop3:%s" % (d, a, b, c, b3)
        for l in [B3(20, PR, PR + 1, PR + 2), B3(21, PR + 8, PR + 9, PR + 10), B3(22, PR + 3, PR + 4, PR + 5), "%s v21, v21, v%d" % (op2, PR + 11),
                  B3(20, 20, PR + 6, PR + 7), "v_cndmask_b32 v21, v22, v21, s[74:75]", B3(20, 20, 21, 22), "v_and_b32 v20, s79, v20",
                  "v_cmp_ne_u32 vcc, %s, v20" % ("s79" if pz == 0 else "0"), "s_cbranch_vccz %s" % Lg]: A(l)
        spin_guard(A, L)
        A.label(Lg)
        stamp(A, 2)
        for tl in (1, 0):
            acc = vr(DA + 4 * tl, 4)
            A("v_mfma_f32_16x16x32_bf16 %s, %s, %s, 0" % (acc, vr(PR + 8, 4), vr(Rc + 20 * tl + 16, 4)))
            for i in range(2): A("v_smfmac_f32_16x16x64_bf16 %s, %s, %s, v3" % (acc, vr(PR + 4 * i, 4), vr(Rc + 20 * tl + 8 * i, 8)))
        ng = " neg_lo:[1,1] neg_hi:[1,1]" if pz == 0 else ""
        tg = "v_or_b32 v%d, 1, v%d" if pz == 0 else "v_and_b32 v%d, -2, v%d"
        A("s_nop 4\nv_pk_add_f32 v[%d:%d], v[%d:%d], v[%d:%d]%s" % (DA + 4, DA + 5, DA + 4, DA + 5, DA + 6, DA + 7, ng))
        A(tg % (DA + 4, DA + 4)); A(tg % (DA + 5, DA + 5))
        A("ds_write_b64 v246, v[%d:%d]\nds_read_b64 v[20:21], v245" % (DA + 4, DA + 5))
        A("v_pk_add_f32 v[%d:%d], v[%d:%d], v[%d:%d]%s" % (DA, DA + 1, DA, DA + 1, DA + 2, DA + 3, ng))
        A.label(T + "_sx")
        A("ds_read_b64 v[22:23], v245\ns_waitcnt lgkmcnt(1)\n%s v2, v20, v21\nv_pk_add_f32 v[%d:%d], v[%d:%d], v[20:21]\nv_and_b32 v2, 1, v2" % (op2, DA + 8, DA + 9, DA, DA + 1))
        A("v_cmp_ne_u32 vcc, %d, v2\ns_cbranch_vccz %s_sxg" % (pz ^ 1, T))
        A("ds_read_b64 v[20:21], v245\ns_waitcnt lgkmcnt(1)\n%s v2, v22, v23\nv_pk_add_f32 v[%d:%d], v[%d:%d], v[22:23]\nv_and_b32 v2, 1, v2" % (op2, DA + 8, DA + 9, DA, DA + 1))
        A("v_cmp_ne_u32 vcc, %d, v2\ns_cbranch_vccz %s_sxg" % (pz ^ 1, T))
        spin_guard(A, T + "_sx")
        A.label(T + "_sxg")
        E = DA + 8
        A("v_and_or_b32 v%d, v%d, -2, s68\nv_and_or_b32 v%d, v%d, -2, s68" % (E, E, E + 1, E + 1))
        for k in range(3): A("global_store_dwordx2 v%d, v[%d:%d], %s sc1" % (12 + k, E, E + 1, xb))
        stamp(A, 3)
        if TUNE["sl_x"]: A("s_sleep %d" % TUNE["sl_x"])
        A("s_waitcnt lgkmcnt(0)")
        L = T + "_xp"; Lg = T + "_xg"
        A.label(L)
        for k in range(3): A("global_load_dwordx2 v[%d:%d], v%d, %s sc1" % (XG + 2 * k, XG + 2 * k + 1, 15 + k, xb))
        A("s_waitcnt vmcnt(%d)" % TUNE["xthr"])
        for k in range(3): A("v_bitop3_b32 v%d, v%d, v%d, s68 bitop3:0x7e" % (20 + k, XG + 2 * k, XG + 2 * k + 1))
        A("v_pk_add_f32 v[%d:%d], v[%d:%d], v[%d:%d]\nv_or3_b32 v20, v20, v21, v22" % (DA, DA + 1, E, E + 1, XG, XG + 1))
        A("v_pk_add_f32 v[%d:%d], v[%d:%d], v[%d:%d]\nv_and_b32 v20, 1, v20" % (DA + 2, DA + 3, XG + 2, XG + 3, XG + 4, XG + 5))
        A("v_cmp_ne_u32 vcc, 0, v20\ns_cbranch_vccz %s" % Lg)
        spin_guard(A, L)
        A.label(Lg)
        A("v_pk_add_f32 v[%d:%d], v[%d:%d], v[%d:%d]" % (DA, DA + 1, DA, DA + 1, DA + 2, DA + 3))
        A("v_cvt_pk_bf16_f32 v%d, v%d, v%d\nv_pk_min_u16 v%d, s78, v%d" % (DA, DA, DA + 1, DA, DA))
        local_store(A, ool, ["global_store_dword v7, v%d, s[60:61]" % DA])
        stamp(A, 4)
        if pz == 0:
            A("s_cmp_eq_u32 s44, 0\ns_cbranch_scc1 %s_first" % T)
            ool.b.append("%s_first:\ns_waitcnt vmcnt(1)\ns_branch %s_nopr" % (T, T))
        pr(T, Ro, True, wait=1)
        A.label(T + "_nopr")
        rst = ["global_store_dwordx4 v6, %s, %s" % (vr(SENT, 4), yb), "global_store_dwordx4 v6, %s, %s offset:1024" % (vr(SENT, 4), yb)]
        local_store(A, ool, rst + ["global_store_dword v7, v%d, s[80:81]" % SENT])
        Ll = A.newlabel("UL"); Lc = A.newlabel("UC")
        A("s_cmp_eq_u32 s88, 0\ns_cbranch_scc1 %s" % Ll)
        for i in range(8):
            for r in range(4): A("v_mov_b32 v%d, v%d" % (ureg(Ro, i) + r, USTG + 4 * i + r))
        A.label(Lc)
        B = A.l; A.l = []
        A.label(Ll); u_load("s47", lambda i: ureg(Ro, i)); A("s_branch %s" % Lc)
        ool.b.append("\n".join(A.l)); A.l = B
        stamp(A, 5)
        stamp_out(A, 20)
        if TUNE["sl_pub"]: A("s_sleep %d" % TUNE["sl_pub"])
        A("s_add_u32 s44, s44, 1")
        A("s_branch CB%d_top" % (pz ^ 1))
        A.label(Lfin)
        A("s_waitcnt vmcnt(0)")
        pr(T + "e", Ro, True, thru=True)
        A("s_barrier")
        pt_setup("s44")
        pr(T + "f", Rc, False, thru=True)
        A("s_sub_u32 s86, s53, 1"); op_flag("s86", True)
        A("s_waitcnt vmcnt(0)")
        op_flag(thru=True)
        A("s_endpgm")

def gen_k2(A, nsteps=64):
    ool = OOL()
    kernel_head(A, "main_kernel")
    A("s_cmp_ge_u32 s2, 256\ns_cbranch_scc1 K2_exit")
    code_touch(A, "K2_last", 98304, vdst=5, sb=96)
    A("s_load_dwordx2 s[6:7], s[0:1], %d" % K_DBG)
    prologue_common(A)
    A("s_mov_b32 s66, 0\ns_mov_b32 s95, 0xffff0000")
    claim_role(A)
    A("s_cmp_ge_u32 s40, 4\ns_cbranch_scc1 K2_bulk")
    A("s_cmp_ge_u32 s41, 30\ns_cbranch_scc1 K2_exit")
    A("s_cmp_ge_u32 s41, 26\ns_cbranch_scc1 K2_pf")
    A("s_cmp_ge_u32 s41, 16\ns_cbranch_scc1 K2_cmb")
    A("s_cmp_ge_u32 s41, 8\ns_cbranch_scc1 K2_vo")
    role_qk(A, ool, nsteps)
    A.label("K2_vo")
    A("s_sub_u32 s41, s41, 8")
    role_vo(A, ool, nsteps)
    A.label("K2_cmb")
    A("s_sub_u32 s41, s41, 16")
    role_cmb(A, ool, nsteps)
    A.label("K2_pf")
    A("s_sub_u32 s41, s41, 26")
    role_pf(A, nsteps)
    for b in ool.b: A(b)
    A.label("K2_abort")
    A("v_mov_b32 v20, 64\nv_mov_b32 v21, s2\nv_add_u32 v21, 0x10000, v21\nglobal_store_dword v20, v21, s[6:7]")
    A.label("K2_exit")
    A("s_endpgm")
    A.label("K2_bulk")
    A("s_sub_u32 s40, s40, 4\ns_lshl_b32 s41, s41, 2\ns_add_u32 s40, s40, s41")
    def bst(k):
        if rec.STAMPS: A("s_memrealtime s[%d:%d]" % (94 + 2 * k, 95 + 2 * k))
    bst(0)
    A("s_cmp_ge_u32 s40, 96\ns_cbranch_scc1 K2_ug")
    role_proj(A, "s40")
    A("s_branch K2_ffn")
    A.label("K2_ug")
    role_ug(A, "s40")
    A.label("K2_ffn")
    bst(1)
    role_ffn1(A, "s40"); bst(2)
    role_ffn2(A, "s40"); bst(3)
    if rec.STAMPS:
        A("s_waitcnt lgkmcnt(0)\ns_lshl_b32 s48, s40, 4\ns_add_u32 s48, s48, 0x%x\nv_mov_b32 v2, s48\nv_mov_b32 v4, s94\nv_mov_b32 v5, s96\nv_mov_b32 v6, s98\nv_mov_b32 v7, s100" % (STB + 0x300000))
        A("global_store_dwordx4 v2, v[4:7], s[4:5]")
    A("s_endpgm")
    A.label("K2_last")
    return kernel_desc("main_kernel", 512, 102, 256)

def gen_k3(A, NP=4):
    kernel_head(A, "fin_kernel")
    A("s_cmp_ge_u32 s2, 320\ns_cbranch_scc1 K3_exit")
    A("s_load_dwordx2 s[6:7], s[0:1], %d" % K_OUT)
    prologue_common(A)
    A("s_lshl_b32 s8, s2, 2\ns_add_u32 s8, s8, s3")
    A("s_mul_i32 s9, s8, 6554\ns_lshr_b32 s9, s9, 16\ns_mul_i32 s10, s9, 10\ns_sub_u32 s10, s8, s10")
    A("s_lshl_b32 s11, s8, 12\ns_add_u32 s11, s11, 0x%x\ns_add_u32 s12, s4, s11\ns_addc_u32 s13, s5, 0" % BASE)
    A("s_lshl_b32 s11, s8, 11\ns_add_u32 s11, s11, 0x%x\ns_add_u32 s14, s4, s11\ns_addc_u32 s15, s5, 0" % OP)
    A("v_lshlrev_b32 v3, 4, v1\nv_lshlrev_b32 v4, 3, v1")
    for c in range(4): A("global_load_dwordx4 v[%d:%d], v3, s[12:13] offset:%d" % (8 + 4 * c, 11 + 4 * c, c * 1024))
    for p in range(NP):
        for c in range(4): A("global_load_dwordx2 v[%d:%d], v4, s[14:15] offset:%d" % (24 + (p * 4 + c) * 2, 25 + (p * 4 + c) * 2, c * 512))
        if p < NP - 1: A("s_add_u32 s14, s14, 2621440\ns_addc_u32 s15, s15, 0")
    A("s_mul_i32 s11, s9, 20480\ns_lshl_b32 s10, s10, 7\ns_add_u32 s11, s11, s10\ns_add_u32 s6, s6, s11\ns_addc_u32 s7, s7, 0")
    A("v_and_b32 v5, 15, v1\nv_mul_u32_u24 v5, 1280, v5\nv_lshrrev_b32 v6, 4, v1\nv_lshl_add_u32 v5, v6, 3, v5")
    for p in range(NP):
        A("s_waitcnt vmcnt(%d)" % ((NP - 1 - p) * 4))
        for c in range(4):
            for h in range(2):
                s_ = 24 + (p * 4 + c) * 2 + h; a = 8 + 4 * c + 2 * h
                A("v_lshlrev_b32 v6, 16, v%d\nv_and_b32 v7, 0xffff0000, v%d\nv_add_f32 v%d, v%d, v6\nv_add_f32 v%d, v%d, v7" % (s_, s_, a, a, a + 1, a + 1))
    for c in range(4):
        a = 8 + 4 * c
        A("v_cvt_pk_bf16_f32 v%d, v%d, v%d\nv_cvt_pk_bf16_f32 v%d, v%d, v%d" % (a, a, a + 1, a + 1, a + 2, a + 3))
        A("global_store_dwordx2 v5, v[%d:%d], s[6:7] offset:%d" % (a, a + 1, c * 32))
    A.label("K3_exit")
    A("s_endpgm")
    A.label("ALL_last")
    return kernel_desc("fin_kernel", 56, 24)

def role_fwd(A, nsteps=64):
    A.c("==== role FWD")
    A("s_mul_i32 s48, s40, 256\ns_add_u32 s48, s48, 0x%x\nv_min_u32 v8, 39, v1\nv_lshlrev_b32 v8, 2, v8\nv_add_u32 v8, s48, v8" % FL_O)
    A("s_mul_i32 s48, s40, 2621440\ns_mul_i32 s49, s3, 10240\ns_add_u32 s48, s48, s49\ns_add_u32 s48, s48, 0x%x\nv_lshlrev_b32 v9, 4, v1\nv_add_u32 v9, s48, v9" % OP)
    A("v_add_u32 v10, 4096, v9\nv_add_u32 v11, 8192, v9\ns_lshl_b32 s58, s40, 2\ns_add_u32 s58, s58, 0x%x\ns_mov_b32 s44, 0" % FL_F)
    fl = flag_store(A, "s58", 4)
    A.label("FW_loop")
    A("s_lshl_b32 s48, s44, 10\ns_add_u32 s50, s4, s48\ns_addc_u32 s51, s5, 0")
    A.label("FW_poll")
    A("global_load_dword v12, v8, s[50:51] sc1\ns_waitcnt vmcnt(0)\nv_cmp_ne_u32 vcc, 1, v12\ns_cbranch_vccz FW_go\ns_sleep 2")
    spin_guard(A, "FW_poll")
    A.label("FW_go")
    A("s_mul_i32 s48, s44, 40960\ns_add_u32 s50, s4, s48\ns_addc_u32 s51, s5, 0\ns_add_u32 s52, s50, 0x%x\ns_addc_u32 s53, s51, 0" % (OP2 - OP))
    for n in range(10): A("global_load_dwordx4 %s, v%d, s[50:51] offset:%d sc1" % (vr(24 + 4 * n, 4), 9 + n // 4, (n % 4) * 1024))
    for n in range(10): A("s_waitcnt vmcnt(9)\nglobal_store_dwordx4 v%d, %s, s[52:53] offset:%d sc1" % (9 + n // 4, vr(24 + 4 * n, 4), (n % 4) * 1024))
    A("s_waitcnt vmcnt(0)\ns_barrier")
    fl("s44")
    A("s_add_u32 s44, s44, 1\ns_cmp_lt_u32 s44, %d\ns_cbranch_scc1 FW_loop\ns_endpgm" % (nsteps - 2))

def role_init(A):
    A.c("==== init")
    A("s_load_dwordx4 s[12:15], s[0:1], %d" % K_X)
    A("s_lshl_b32 s16, s40, 4\ns_add_u32 s16, s16, s41\ns_sub_u32 s16, s16, 16\ns_lshl_b32 s19, s16, 3\ns_lshl_b32 s48, s3, 1\ns_add_u32 s19, s19, s48\ns_waitcnt lgkmcnt(0)")
    if rec.STAMPS: A("s_memrealtime s[32:33]")
    A("s_cmp_lg_u32 s41, 31\ns_cbranch_scc1 IN_m0a")
    for rnd in range(10):
        A("v_add_u32 v3, %d, v0" % (256 * rnd))
        A("v_lshrrev_b32 v4, 6, v3\nv_lshlrev_b32 v5, 4, v4\nv_and_b32 v6, 8, v3\nv_add_u32 v5, v5, v6")
        A("v_lshrrev_b32 v6, 2, v3\nv_xor_b32 v6, v6, v4\nv_and_b32 v6, 1, v6\nv_lshl_add_u32 v5, v6, 2, v5")
        A("v_bfe_u32 v6, v3, 1, 1\nv_add_u32 v5, v5, v6\nv_and_b32 v6, 1, v3\nv_lshl_add_u32 v5, v6, 1, v5")
        A("v_bfe_u32 v6, v3, 4, 2\nv_mul_u32_u24 v6, 2560, v6\nv_lshl_add_u32 v5, v5, 1, v6")
        A("global_load_ushort v%d, v5, s[14:15]\nglobal_load_ushort v%d, v5, s[14:15] offset:1280" % (120 + 2 * rnd, 121 + 2 * rnd))
    A.label("IN_m0a")
    k1b.ln_addr(A)
    A("s_add_u32 s25, s19, 1")
    k1b.ln_load(A, "s19", 64); k1b.ln_load(A, "s25", 84)
    A("v_lshlrev_b32 v104, 4, v0")
    for r in range(4): A("v_mov_b32 v%d, -1\nv_mov_b32 v%d, 0" % (108 + r, 112 + r))
    def fill(off_ops, n, reg):
        for l in off_ops: A(l)
        A("s_add_u32 s20, s4, s17\ns_addc_u32 s21, s5, 0")
        for i in range(n): A("global_store_dwordx4 v104, %s, s[20:21] sc1\ns_add_u32 s20, s20, 4096\ns_addc_u32 s21, s21, 0" % reg)
    fill(["s_min_u32 s17, s16, 29", "s_lshl_b32 s17, s17, 12", "s_add_u32 s17, s17, 0x%x" % (MEMB + 40960)], 1, "v[108:111]")
    fill(["s_lshl_b32 s17, s16, 13", "s_add_u32 s17, s17, 0x%x" % PM], 2, "v[112:115]")
    fill(["s_mul_i32 s17, s16, 12288", "s_add_u32 s17, s17, 0x%x" % YB], 3, "v[108:111]")
    xr_base(A, "s26", "s4")
    fill(["s_lshl_b32 s17, s16, 14", "s_add_u32 s17, s17, s26"], 4, "v[112:115]")
    A("s_waitcnt vmcnt(20)")
    if rec.STAMPS: A("s_memrealtime s[34:35]")
    k1b.ln_compute(A, "s19", 64, " sc1")
    A("s_waitcnt vmcnt(15)"); k1b.ln_compute(A, "s25", 84, " sc1")
    A("s_cmp_lg_u32 s41, 31\ns_cbranch_scc1 IN_nom")
    A("s_mul_i32 s17, s40, 10240\ns_add_u32 s17, s17, 0x%x\ns_add_u32 s20, s4, s17\ns_addc_u32 s21, s5, 0\ns_mov_b32 s22, 0xfffefffe\nv_lshlrev_b32 v5, 2, v0" % MEMB)
    for rnd in range(10):
        r = 120 + 2 * rnd
        A("v_lshl_or_b32 v%d, v%d, 16, v%d\nv_pk_min_u16 v%d, s22, v%d\nglobal_store_dword v5, v%d, s[20:21] offset:%d sc1" % (r, r + 1, r, r, r, r, (rnd % 4) * 1024))
        if rnd % 4 == 3: A("s_add_u32 s20, s20, 4096\ns_addc_u32 s21, s21, 0")
    A.label("IN_nom")
    if rec.STAMPS: A("s_memrealtime s[36:37]")
    A("s_waitcnt vmcnt(0)\ns_barrier")
    if rec.STAMPS:
        A("s_memrealtime s[38:39]\ns_waitcnt lgkmcnt(0)\ns_lshl_b32 s48, s16, 4\ns_add_u32 s48, s48, 0x%x\nv_mov_b32 v2, s48\nv_mov_b32 v4, s32\nv_mov_b32 v5, s34\nv_mov_b32 v6, s36\nv_mov_b32 v7, s38" % (STB + 0x310000))
        A("global_store_dwordx4 v2, v[4:7], s[4:5]")
    A("s_cmp_lg_u32 s3, 0\ns_cbranch_scc1 IN_c0\nv_mov_b32 v3, 32\nv_mov_b32 v4, 1\ns_mov_b64 exec, 1\nglobal_atomic_add v3, v4, s[6:7] sc1")
    A("s_mov_b64 exec, -1")
    A.label("IN_c0")
    A("s_cmp_lt_u32 s41, 26\ns_cbranch_scc1 IN_done\ns_mov_b64 exec, 1")
    A("s_lshl_b32 s18, s16, 2\ns_add_u32 s18, s18, s3\ns_and_b32 s17, s18, 31\ns_lshl_b32 s17, s17, 14\ns_lshr_b32 s18, s18, 5\ns_lshl_b32 s18, s18, 10\ns_add_u32 s18, s18, s17")
    A("s_add_u32 s18, s18, s26\ns_add_u32 s18, s18, 0x40000\nv_mov_b32 v4, 0\ns_mov_b32 s24, 0\ns_mov_b32 s27, 0x10000")
    A("s_getreg_b32 s19, hwreg(HW_REG_XCC_ID)\ns_bfe_u32 s19, s19, 0x10002")
    A.label("IN_cal")
    for p in range(2):
        A("s_add_u32 s17, s18, %d\nv_mov_b32 v3, s17\ns_memtime s[20:21]\ns_waitcnt lgkmcnt(0)" % (p * 8192))
        A("global_store_dword v3, v4, s[4:5] sc1\ns_waitcnt vmcnt(0)\nglobal_load_dword v5, v3, s[4:5] sc1\ns_waitcnt vmcnt(0)")
        A("s_memtime s[22:23]\ns_waitcnt lgkmcnt(0)\ns_sub_u32 s%d, s22, s20" % (30 + p))
    A("s_cmp_lt_u32 s31, s30\ns_cselect_b32 s17, 1, 0\ns_xor_b32 s17, s17, s19\ns_cmp_eq_u32 s24, 0\ns_cselect_b32 s17, 0, s17\ns_add_u32 s27, s27, s17")
    A("s_add_u32 s18, s18, 256\ns_add_u32 s24, s24, 1\ns_cmp_lt_u32 s24, 3\ns_cbranch_scc1 IN_cal")
    A("v_mov_b32 v3, 36\nv_mov_b32 v4, s27\nglobal_atomic_add v3, v4, s[6:7] sc1\ns_mov_b64 exec, -1")
    A.label("IN_done")

def claim_role(A):
    A("s_cmp_lg_u32 s3, 0\ns_cbranch_scc1 CL_wait")
    A("s_getreg_b32 s40, hwreg(HW_REG_XCC_ID)\ns_and_b32 s40, s40, 7\ns_lshr_b32 s41, s2, 3\ns_lshl_b32 s48, 1, s41\ns_and_b32 s49, s40, 3\ns_lshl_b32 s49, s49, 2")
    A("s_lshr_b32 s50, s40, 2\ns_lshl_b32 s50, s50, 7\ns_add_u32 s49, s49, s50")
    A("s_mov_b64 exec, 1\nv_mov_b32 v8, s49\nv_mov_b32 v9, s48\nv_mov_b32 v10, 0\nv_mov_b32 v11, 1")
    A("global_atomic_or v12, v8, v9, s[6:7] offset:96 sc0 sc1\ns_waitcnt vmcnt(0)")
    A("v_readfirstlane_b32 s49, v12\ns_and_b32 s49, s49, s48\ns_cbranch_scc0 CL_won")
    A("global_atomic_add v12, v10, v11, s[6:7] offset:132 sc0 sc1\ns_waitcnt vmcnt(0)\nv_readfirstlane_b32 s50, v12")
    A.label("CL_all")
    A("global_load_dword v20, v10, s[6:7] offset:132 sc1\ns_waitcnt vmcnt(0)")
    A("global_load_dwordx4 v[12:15], v10, s[6:7] offset:96 sc1\nglobal_load_dwordx4 v[16:19], v10, s[6:7] offset:224 sc1\ns_waitcnt vmcnt(0)")
    for w in range(8): A("v_bcnt_u32_b32 v20, v%d, v20" % (12 + w))
    A("s_nop 0\nv_readfirstlane_b32 s49, v20\ns_cmp_ge_u32 s49, 256\ns_cbranch_scc1 CL_pick\ns_sleep 4")
    spin_guard(A, "CL_all")
    A.label("CL_pick")
    for w in range(8):
        L = A.newlabel("CP")
        A("v_readfirstlane_b32 s48, v%d\ns_mov_b32 s40, %d\ns_not_b32 s48, s48\ns_bcnt1_i32_b32 s49, s48\ns_cmp_lt_u32 s50, s49\ns_cbranch_scc1 CL_bit\ns_sub_u32 s50, s50, s49" % (12 + w, w))
    A("s_branch K2_abort")
    A.label("CL_bit")
    A("s_ff1_i32_b32 s41, s48\ns_cmp_eq_u32 s50, 0\ns_cbranch_scc1 CL_won\ns_bitset0_b32 s48, s41\ns_sub_u32 s50, s50, 1\ns_branch CL_bit")
    A.label("CL_won")
    A("s_lshl_b32 s48, s41, 3\ns_add_u32 s48, s48, s40\nv_mov_b32 v9, s48\nds_write_b32 v10, v9\ns_mov_b64 exec, -1\ns_waitcnt lgkmcnt(0)")
    A.label("CL_wait")
    A("s_barrier\nv_mov_b32 v10, 0\nds_read_b32 v9, v10\ns_waitcnt lgkmcnt(0)\nv_readfirstlane_b32 s2, v9\ns_and_b32 s2, s2, 255\ns_and_b32 s40, s2, 7\ns_lshr_b32 s41, s2, 3\ns_waitcnt vmcnt(0)\ns_barrier")

def gen_merged(A, name, nsteps=64):
    ool = OOL()
    kernel_head(A, name)
    A("s_cmp_ge_u32 s2, 256\ns_cbranch_scc1 K2_exit")
    if TUNE["ctouch"]: code_touch(A, "K2_last", 98304, vdst=5, sb=96)
    A("s_load_dwordx2 s[6:7], s[0:1], %d" % K_DBG)
    prologue_common(A)
    A("s_mov_b32 s66, 0\ns_mov_b32 s95, 0xffff0000")
    claim_role(A)
    A("s_cmp_ge_u32 s40, 4\ns_cbranch_scc1 K2_bulk")
    A("s_cmp_ge_u32 s41, 16\ns_cbranch_scc1 K2_init")
    A("s_cmp_ge_u32 s41, 8\ns_cbranch_scc1 K2_vo")
    role_qk(A, ool, nsteps)
    A.label("K2_vo")
    A("s_sub_u32 s41, s41, 8")
    role_vo(A, ool, nsteps)
    A.label("K2_init")
    role_init(A)
    A("s_cmp_ge_u32 s41, 31\ns_cbranch_scc1 K2_exit")
    A("s_cmp_eq_u32 s41, 30\ns_cbranch_scc1 K2_fwd")
    A("s_cmp_ge_u32 s41, 26\ns_cbranch_scc1 K2_pf")
    A("s_sub_u32 s41, s41, 16")
    role_cmb(A, ool, nsteps)
    A.label("K2_fwd")
    init_wait(A)
    role_fwd(A, nsteps)
    A.label("K2_pf")
    A("s_sub_u32 s41, s41, 26")
    init_wait(A)
    role_pf(A, nsteps)
    for b in ool.b: A(b)
    A.label("K2_abort")
    A("v_mov_b32 v20, 64\nv_mov_b32 v21, s2\nv_add_u32 v21, 0x10000, v21\nglobal_store_dword v20, v21, s[6:7]")
    A.label("K2_exit")
    A("s_endpgm")
    A.label("K2_bulk")
    A("s_sub_u32 s40, s40, 4\ns_lshl_b32 s41, s41, 2\ns_add_u32 s40, s40, s41")
    def bst(k):
        if rec.STAMPS: A("s_memrealtime s[%d:%d]" % (94 + 2 * k, 95 + 2 * k))
    bst(0)
    A("s_cmp_ge_u32 s40, 96\ns_cbranch_scc1 K2_ug")
    role_proj(A, "s40")
    A("s_branch K2_ffn")
    A.label("K2_ug")
    role_ug(A, "s40")
    A.label("K2_ffn")
    bst(1)
    role_ffn1(A, "s40")
    role_ffn2(A, "s40"); bst(2)
    role_fin(A, "s40"); bst(3)
    if rec.STAMPS:
        A("s_waitcnt lgkmcnt(0)\ns_lshl_b32 s48, s40, 4\ns_add_u32 s48, s48, 0x%x\nv_mov_b32 v2, s48\nv_mov_b32 v4, s94\nv_mov_b32 v5, s96\nv_mov_b32 v6, s98\nv_mov_b32 v7, s100" % (STB + 0x300000))
        A("global_store_dwordx4 v2, v[4:7], s[4:5]")
    A("s_endpgm")
    A.label("K2_last")
    return kernel_desc(name, 512, 102, 256)
```

```python
import build3, rec, rec2, k1b, bulk, hz
from fw import *
bulk.MERGED = False; bulk.WFLAG = ""
def build(path):
    A = Asm()
    descs = [k1b.gen_k1b(A), rec2.gen_k2(A), rec2.gen_k3(A)]
    launch = ["; @launch kernel=prep_kernel grid=(%d,1,1) block=(256,1,1) lds=0" % k1b.K1B_GRID,
              "; @launch kernel=main_kernel grid=(256,1,1) block=(256,1,1) lds=163840",
              "; @launch kernel=fin_kernel grid=(320,1,1) block=(256,1,1) lds=0"]
    t = "\n".join(launch) + "\n.amdgcn_target \"amdgcn-amd-amdhsa--gfx950\"\n" + A.text() + "".join(descs)
    open(path, "w").write(t); hz.check(t)
rec.STAMPS = False; build("k3.s"); rec.STAMPS = True; rec.STSET = 0; build("k3_st.s")
```
